```python
import torch

def _softmax(x, axis=-1):
    return torch.softmax(x, dim=axis)

def _gelu(x):
    return torch.nn.functional.gelu(x, approximate='tanh')

def _silu(x):
    return torch.nn.functional.silu(x)

def _sigmoid(x):
    return torch.sigmoid(x)

def _layernorm(x, axis=-1, eps=1e-05):
    m = x.mean(dim=axis, keepdim=True)
    v = x.var(dim=axis, keepdim=True, unbiased=False)
    return (x - m) / torch.sqrt(v + eps)

def _scatter_add(tgt, idx, src, axis=0):
    return tgt.clone().index_add_(axis, idx, src)

def _segment_sum(src, seg, n):
    out = torch.zeros((n,) + src.shape[1:], dtype=src.dtype)
    return out.index_add_(0, seg, src)

def _pad(x, pw):
    flat = tuple((v for pair in reversed(pw) for v in pair))
    return torch.nn.functional.pad(x, flat)
kernel_name = 'gated_mix__linear_kernel_hedgehog__mixer_gmlp__prompt'

def setup_inputs():

    _w = lambda a: (lambda t: t.to(torch.bfloat16) if t.is_floating_point() else t)(torch.as_tensor(a))

    def _A_setup():
        B, S, D, H = (1, 2048, 448, 16)
        Dh = D // H
        return {'x': _w((lambda *s: torch.randn(*s, dtype=torch.bfloat16) * 0.05)(B, S, D)), 'wqkv': _w((lambda *s: torch.randn(*s, dtype=torch.bfloat16) * 1.6)(D, 3 * D)), 'w_phi': _w((lambda *s: torch.randn(*s, dtype=torch.bfloat16) * 1.6)(H, Dh, Dh) * Dh ** (-0.5)), 'wo': _w((lambda *s: torch.randn(*s, dtype=torch.bfloat16) * 0.1)(D, D))}
    _A_in = _A_setup()

    def _B_setup():
        B, S, D, F = (1, 2048, 448, 1792)
        Fh = F // 2
        return {'x': _w((lambda *s: torch.randn(*s, dtype=torch.bfloat16) * 0.05)(B, S, D)), 'w_in': _w((lambda *s: torch.randn(*s, dtype=torch.bfloat16) * 0.4)(D, 2 * Fh)), 'w_sp': _w(0.01 * (lambda *s: torch.randn(*s, dtype=torch.bfloat16) * 0.4)(S, S)), 'b_sp': _w(1.0 + 0.01 * (lambda *s: torch.randn(*s, dtype=torch.bfloat16) * 0.05)(S)), 'w_out': _w((lambda *s: torch.randn(*s, dtype=torch.bfloat16) * 0.05)(Fh, D))}
    _B_in = _B_setup()
    return {'A_x': _A_in['x'], 'A_wqkv': _A_in['wqkv'], 'A_w_phi': _A_in['w_phi'], 'A_wo': _A_in['wo'], 'B_x': _B_in['x'], 'B_w_in': _B_in['w_in'], 'B_w_sp': _B_in['w_sp'], 'B_b_sp': _B_in['b_sp'], 'B_w_out': _B_in['w_out'], 'gate_w': _w((lambda *s: torch.randn(*s, dtype=torch.bfloat16) * 0.05)(448) * 16.0)}

def reference(A_x, A_wqkv, A_w_phi, A_wo, B_x, B_w_in, B_w_sp, B_b_sp, B_w_out, gate_w):

    def _A_ref(x, wqkv, w_phi, wo):
        B, S, D = x.shape
        H = 16
        Dh = D // H
        qkv = (lambda x, *d: x.permute(*d))((x @ wqkv).reshape(B, S, 3, H, Dh), 2, 0, 3, 1, 4)
        q, k, v = (qkv[0], qkv[1], qkv[2])
        pq = torch.einsum('bhsd,hdf->bhsf', q, w_phi)
        pk = torch.einsum('bhsd,hdf->bhsf', k, w_phi)
        phi_q = torch.concatenate([_softmax(pq, axis=-1), _softmax(-pq, axis=-1)], axis=-1)
        phi_k = torch.concatenate([_softmax(pk, axis=-1), _softmax(-pk, axis=-1)], axis=-1)
        kv = torch.einsum('bhsf,bhsd->bhfd', phi_k, v)
        z = torch.einsum('bhsf->bhf', phi_k)
        num = torch.einsum('bhqf,bhfd->bhqd', phi_q, kv)
        den = torch.einsum('bhqf,bhf->bhq', phi_q, z)[..., None] + 1e-06
        o = num / den
        return (lambda x, *d: x.permute(*d))(o, 0, 2, 1, 3).reshape(B, S, D) @ wo

    def _B_ref(x, w_in, w_sp, b_sp, w_out):
        B, S, D = x.shape
        F = w_in.shape[-1]
        Fh = F // 2
        z = _gelu(torch.einsum('bsd,df->bsf', x, w_in))
        z1 = z[..., :Fh].clone()
        z2 = _layernorm(z[..., Fh:], axis=-1)
        g = torch.einsum('ts,bsf->btf', w_sp, z2) + b_sp[None, :, None]
        return torch.einsum('bsf,fd->bsd', z1 * g, w_out)
    x = A_x
    g = _sigmoid((x * gate_w).sum(-1, keepdims=True))
    a = _A_ref(x, A_wqkv, A_w_phi, A_wo)
    b = _B_ref(x, B_w_in, B_w_sp, B_b_sp, B_w_out)
    return g * a + (1 - g) * b
```

```python
import re

REG_RE = re.compile(r'^(-|abs\()?([vas])(\d+)\)?$')
RNG_RE = re.compile(r'^(-)?([vas])\[(\d+):(\d+)\]$')
TRANS = ('v_exp_f32', 'v_log_f32', 'v_rcp_f32', 'v_rsq_f32', 'v_sqrt_f32', 'v_sin_f32', 'v_cos_f32')
NO_SCC = ('s_mov_b32', 's_mov_b64', 's_movk_i32', 's_mul_i32', 's_mul_hi_u32', 's_cselect_b32', 's_cselect_b64',
          's_getpc_b64', 's_getreg_b32', 's_mulk_i32')


def regs_of(tok):
    tok = tok.strip()
    m = REG_RE.match(tok)
    if m:
        return [m.group(2) + m.group(3)]
    m = RNG_RE.match(tok)
    if m:
        return [m.group(2) + str(i) for i in range(int(m.group(3)), int(m.group(4)) + 1)]
    if tok in ('vcc', 'm0', 'exec'):
        return [tok]
    if tok in ('vcc_lo', 'vcc_hi'):
        return ['vcc']
    return []


class Op:
    __slots__ = ('text', 'mn', 'kind', 'rd', 'wr', 'lrd', 'lwr', 'prio', 'lat', 'idx', 'preds', 'succs', 'npred',
                 'ready', 'done', 'srcA', 'srcB', 'srcC', 'dst', 'notbefore', 'data', 'seq', 'size', 'after')

    def __init__(self, text, lrd=(), lwr=(), prio=None, lat=None, notbefore=None, after=()):
        self.text = text
        self.after = [a for a in after if a is not None]
        self.lrd = set(lrd)
        self.lwr = set(lwr)
        self.prio = prio
        self.notbefore = notbefore
        self.srcA = self.srcB = self.srcC = self.dst = self.data = ()
        parts = text.split(None, 1)
        mn = parts[0]
        base = re.sub(r'_(e32|e64)$', '', mn)
        self.mn = base
        rest = parts[1] if len(parts) > 1 else ''
        toks = [t.strip() for t in rest.split(',')] if rest else []
        mods = ''
        if toks:
            last = toks[-1].split(None, 1)
            clean = []
            for t in toks:
                sp = t.split(None, 1)
                clean.append(sp[0] if sp else '')
                if len(sp) > 1:
                    break
            mods = rest
            toks = clean
        R = [regs_of(t) for t in toks]
        rd, wr = set(), set()
        kind = None
        if base.startswith('v_mfma'):
            kind = 'mfma'
            wr.update(R[0]); rd.update(R[1]); rd.update(R[2]); rd.update(R[3])
            self.dst, self.srcA, self.srcB, self.srcC = tuple(R[0]), tuple(R[1]), tuple(R[2]), tuple(R[3])
            rd.add('exec')
        elif base.startswith('v_permlane') and 'swap' in base:
            kind = 'valu'
            wr.update(R[0]); wr.update(R[1]); rd.update(R[0]); rd.update(R[1]); rd.add('exec')
        elif base.startswith('v_'):
            kind = 'trans' if base in TRANS else ('pk' if base.startswith('v_pk_') and 'f32' in base else 'valu')
            wr.update(R[0])
            k = 1
            if base in ('v_add_co_u32', 'v_addc_co_u32', 'v_sub_co_u32'):
                wr.update(R[1]); k = 2
            for r in R[k:]:
                rd.update(r)
            if base in ('v_fmac_f32', 'v_dot2c_f32_bf16'):
                rd.update(R[0])
            rd.add('exec')
        elif base.startswith('ds_read'):
            kind = 'ds_r'
            wr.update(R[0]); rd.update(R[1]); rd.add('exec')
            if 'd16' in base:
                rd.update(R[0])
        elif base.startswith('ds_write'):
            kind = 'ds_w'
            for r in R:
                rd.update(r)
            rd.add('exec')
        elif base.startswith('buffer_load'):
            if re.search(r'\blds\b', mods):
                kind = 'dma'
                for r in R:
                    rd.update(r)
                rd.add('m0')
            else:
                kind = 'vld'
                wr.update(R[0])
                for r in R[1:]:
                    rd.update(r)
                if 'd16' in base:
                    rd.update(R[0])
            rd.add('exec')
        elif base.startswith('global_load'):
            kind = 'vld'
            wr.update(R[0])
            for r in R[1:]:
                rd.update(r)
            rd.add('exec')
        elif base.startswith('buffer_store'):
            kind = 'vst'
            for r in R:
                rd.update(r)
            self.data = tuple(R[0])
            rd.add('exec')
        elif base == 's_barrier':
            kind = 'barrier'
        elif base in ('s_memtime', 's_memrealtime'):
            kind = 'stamp'
            wr.update(R[0])
        elif base.startswith('s_load'):
            kind = 'smem'
            wr.update(R[0]); rd.update(R[1])
        elif base.startswith('s_cmp'):
            kind = 'salu'
            for r in R:
                rd.update(r)
            wr.add('scc')
        elif base in ('s_nop', 's_waitcnt', 's_setprio', 's_sleep', 's_endpgm') or base.startswith('s_cbranch') or base == 's_branch':
            kind = 'ctl'
            if 'scc' in base: rd.add('scc')
            if 'vcc' in base: rd.add('vcc')
        elif base == 'fence':
            kind = 'fence'
            for r in R:
                rd.update(r)
        elif base.startswith('s_'):
            kind = 'salu'
            wr.update(R[0])
            for r in R[1:]:
                rd.update(r)
            if base in ('s_addk_i32', 's_mulk_i32'):
                rd.update(R[0])
            if base not in NO_SCC:
                wr.add('scc')
            if base in ('s_cselect_b32', 's_cselect_b64', 's_addc_u32'):
                rd.add('scc')
            if 'saveexec' in base:
                wr.add('exec'); rd.add('exec')
        elif text.endswith(':'):
            kind = 'label'
        else:
            raise ValueError('unknown op: ' + text)
        self.kind, self.rd, self.wr = kind, rd, wr
        self.lat = lat


ISSUE = {'valu': 4, 'pk': 4, 'trans': 8, 'mfma': 8, 'salu': 4, 'ds_r': 4, 'ds_w': 8, 'dma': 4, 'vld': 4, 'vst': 8,
         'barrier': 4, 'stamp': 4, 'smem': 4, 'ctl': 4, 'fence': 0, 'label': 0}
VM = ('dma', 'vld', 'vst')
DS = ('ds_r', 'ds_w')
VALU = ('valu', 'pk', 'trans')


def need_states(p, c):
    n = 0
    if p.kind == 'mfma':
        d = set(p.dst)
        if c.kind == 'mfma':
            if d & (set(c.srcA) | set(c.srcB)):
                n = max(n, 12)
            if d & set(c.srcC) and tuple(c.srcC) != tuple(p.dst):
                n = max(n, 10)
            if d & set(c.dst) and tuple(c.srcC) != tuple(p.dst):
                n = max(n, 12)
        elif d & (c.rd | c.wr):
            n = max(n, 12)
        if c.kind != 'mfma' and set(p.srcC) & c.wr:
            n = max(n, 7)
    if p.kind in VALU:
        vw = {r for r in p.wr if r[0] in 'va' and r != 'vcc'}
        sw = {r for r in p.wr if r[0] == 's' and r != 'scc' or r == 'vcc'}
        if c.kind == 'mfma' and vw & c.rd:
            n = max(n, 2)
        if c.mn.startswith('v_permlane') and vw & c.rd:
            n = max(n, 2)
        if c.mn in ('v_readfirstlane_b32', 'v_readlane_b32') and vw & c.rd:
            n = max(n, 1)
        if p.kind == 'trans' and c.kind in ('valu', 'pk', 'trans', 'vst', 'ds_w') and vw & c.rd:
            n = max(n, 1)
        if sw & c.rd:
            if c.kind in VM:
                n = max(n, 5)
            elif c.kind in VALU:
                n = max(n, 2)
            else:
                n = max(n, 1)
        if 'op_sel' in p.text and c.kind in VALU and vw & (c.rd | c.wr) and p.kind != 'pk':
            n = max(n, 1)
    if p.kind == 'salu' and 'm0' in p.wr and c.kind == 'dma':
        n = max(n, 1)
    if p.kind == 'vst' and len(p.data) >= 3 and set(p.data) & c.wr:
        n = max(n, 2)
    if 'exec' in p.wr and c.kind == 'mfma':
        n = max(n, 4)
    return n


class Prog:
    def __init__(self, dma_lat=700, ds_lat=100, vld_lat=700, td_busy=64):
        self.out = []
        self.seg = []
        self.vm_q = []
        self.ds_q = []
        self.t = 0
        self.dma_lat, self.ds_lat, self.vld_lat, self.td_busy = dma_lat, ds_lat, vld_lat, td_busy
        self.last_w = {}
        self.readers = {}
        self.cur_prio = 0
        self.nseq = 0
        self.mfma_free = 0
        self.td_free = 0
        self.log = []

    def I(self, text, **kw):
        op = Op(text, **kw)
        if op.prio is None:
            op.prio = self.cur_prio
        op.seq = self.nseq
        self.nseq += 1
        self.seg.append(op)
        return op

    def barrier(self, publish=(), release=(), **kw):
        lrd = [t + '.w' for t in publish]
        lwr = [t + '.v' for t in publish] + [t + '.v' for t in release] + [t + '.f' for t in release]
        return self.I('s_barrier', lrd=lrd, lwr=lwr, **kw)

    def _emit(self, op):
        need = 0
        dist = 0
        for p in reversed(self.out):
            if p.kind == 'label':
                continue
            if dist >= 13:
                break
            need = max(need, need_states(p, op) - dist)
            if p.mn == 's_nop':
                dist += int(p.text.split()[1]) + 1
            elif p.kind != 'fence':
                dist += 1
        if need > 0:
            self.out.append(Op(f's_nop {need - 1}'))
            self.t += 4 * need
        self.out.append(op)

    def _hazard_need(self, op):
        need = 0
        dist = 0
        for p in reversed(self.out):
            if p.kind == 'label':
                continue
            if dist >= 13:
                break
            need = max(need, need_states(p, op) - dist)
            if p.mn == 's_nop':
                dist += int(p.text.split()[1]) + 1
            elif p.kind != 'fence':
                dist += 1
        return need

    def _wait_for(self, vm, ds):
        parts = []
        if vm:
            k = max(self.vm_q.index(o) for o in vm)
            self.t = max(self.t, max(o.done for o in vm))
            n = min(len(self.vm_q) - 1 - k, 63)
            self.vm_q = self.vm_q[len(self.vm_q) - n:] if n else []
            parts.append(f'vmcnt({n})')
        if ds:
            k = max(self.ds_q.index(o) for o in ds)
            self.t = max(self.t, max(o.done for o in ds))
            while k + 1 < len(self.ds_q) and self.ds_q[k + 1].done + 16 <= self.t:
                k += 1
            n = min(len(self.ds_q) - 1 - k, 15)
            self.ds_q = self.ds_q[len(self.ds_q) - n:] if n else []
            parts.append(f'lgkmcnt({n})')
        if parts:
            self.out.append(Op('s_waitcnt ' + ' '.join(parts)))
            self.t += 4

    def flush(self, name='', reorder=True):
        ops = self.seg
        self.seg = []
        t0 = self.t
        n0 = len(self.out)
        lastvm = lastbar = None
        for o in ops:
            o.preds = {}
            o.succs = []
            o.done = None

            def dep(p, comp):
                if p is o:
                    return
                o.preds[p] = o.preds.get(p, False) or comp
            rd = set(o.rd) | {'L:' + x for x in o.lrd}
            wr = set(o.wr) | {'L:' + x for x in o.lwr}
            for r in rd:
                for p in self.last_w.get(r, ()):
                    comp = p.kind in ('vld', 'dma', 'ds_r', 'vst') or (p.kind == 'ds_w' and o.kind not in DS)
                    dep(p, comp)
            for r in wr:
                multi = r.startswith('L:') and not self.readers.get(r) and o.kind in ('dma', 'ds_w', 'vst') and \
                    all(p.kind == o.kind for p in self.last_w.get(r, ()))
                if multi:
                    for p in self.last_w.get(r, ())[:1]:
                        dep(p, False)
                else:
                    for p in self.last_w.get(r, ()):
                        comp = p.kind in ('vld', 'dma') or (p.kind == 'ds_r' and o.kind != 'ds_r') or \
                            (p.kind == 'ds_w' and o.kind not in DS)
                        dep(p, comp)
                for p in self.readers.get(r, ()):
                    comp = r.startswith('L:') and p.kind == 'ds_r' and o.kind not in DS
                    dep(p, comp)
            for r in rd:
                self.readers.setdefault(r, []).append(o)
            for r in wr:
                multi = r.startswith('L:') and not self.readers.get(r) and o.kind in ('dma', 'ds_w', 'vst') and \
                    all(p.kind == o.kind for p in self.last_w.get(r, ()))
                if multi:
                    self.last_w.setdefault(r, []).append(o)
                else:
                    self.last_w[r] = [o]
                    self.readers[r] = [o] if r in rd else []
            for p in o.after:
                dep(p, False)
            if o.kind in VM:
                if lastvm: dep(lastvm, False)
                lastvm = o
            if o.kind == 'barrier':
                if lastbar: dep(lastbar, False)
                lastbar = o
        inseg = set(id(o) for o in ops)
        for o in ops:
            o.npred = 0
            for p in o.preds:
                if id(p) in inseg:
                    p.succs.append(o)
                    o.npred += 1
        for o in reversed(ops):
            for s in o.succs:
                if s.prio < o.prio:
                    o.prio = s.prio
        avail = [o for o in ops if o.npred == 0]
        left = len(ops)
        k = 0
        while left:
            if not reorder:
                o = ops[k]; k += 1
            else:
                best = None
                for c in avail:
                    rt = self.t
                    for p, comp in c.preds.items():
                        if comp and (p in self.vm_q or p in self.ds_q):
                            rt = max(rt, p.done)
                    rt = max(rt, self.t + 4 * self._hazard_need(c))
                    if c.kind == 'mfma': rt = max(rt, self.mfma_free)
                    if c.kind == 'pk': rt = max(rt, self.mfma_free + 10)
                    if c.kind in VM: rt = max(rt, self.td_free)
                    if c.notbefore is not None: rt = max(rt, t0 + c.notbefore)
                    late = max(0, rt - self.t)
                    if late <= 3: late = 0
                    key = (late, 0 if c.kind == 'mfma' else 1, c.prio, c.seq)
                    if best is None or key < best[0]:
                        best = (key, c)
                o = best[1]
                avail.remove(o)
            vm = [p for p, comp in o.preds.items() if comp and p in self.vm_q]
            ds = [p for p, comp in o.preds.items() if comp and p in self.ds_q]
            self._wait_for(vm, ds)
            if o.kind != 'fence':
                self._emit(o)
            if o.kind == 'mfma':
                self.t = max(self.t, self.mfma_free)
                self.mfma_free = self.t + 32
            if o.kind == 'pk':
                self.t = max(self.t, self.mfma_free + 10)
            if o.kind in VM:
                start = max(self.t, self.td_free)
                self.td_free = start + self.td_busy
                lat = o.lat if o.lat is not None else (self.dma_lat if o.kind == 'dma' else self.vld_lat)
                o.done = start + lat
                if self.vm_q: o.done = max(o.done, self.vm_q[-1].done)
                self.vm_q.append(o)
            elif o.kind in DS:
                o.done = self.t + (o.lat if o.lat is not None else self.ds_lat)
                self.ds_q.append(o)
            else:
                o.done = self.t
            self.t += ISSUE[o.kind]
            left -= 1
            for s in o.succs:
                s.npred -= 1
                if s.npred == 0 and reorder:
                    avail.append(s)
        nm = sum(1 for o in self.out[n0:] if o.kind == 'mfma')
        self.log.append(f'seg {name:12s} model {t0:6d} -> {self.t:6d} ({self.t - t0:5d} clk) insts {len(self.out) - n0:4d} mfma {nm}')

    def raw(self, text):
        assert not self.seg
        op = Op(text)
        if op.kind == 'label':
            self.out.append(op)
            return op
        self._emit(op)
        self.t += 4
        return op

    def drain(self, vm=True, ds=True):
        if vm: self.vm_q = []
        if ds: self.ds_q = []

    def text(self):
        return '\n'.join((o.text if o.kind == 'label' else '  ' + o.text) for o in self.out) + '\n'
```

```python
import sys, struct, math
from asmlib import Prog, Op

NAME = 'gated_mix__linear_kernel_hedgehog__mixer_gmlp__prompt'
KN = NAME + '_kernel'

WS_EPOCH = 0
WS_FZ = 0x1000
WS_FH = 0x10000
WS_GT = 0x20000
WS_STATS = 0x40000
WS_KVP = 0x100000
WS_KVF = 0x300000
WS_Z2 = 0x400000
WS_O = 0x800000
WS_H = 0xA00000
WS_TS = 0xE00000
WS_SIZE = 0x1000000
OOB = 0x40000000

LP = 0
LW = 0x10000
LM = 0x20000
LM_T = LM
LM_V = LM + 0x4000
LM_PHI = LM + 0x6000
LDS_BYTES = 163840

TAGC = 0x9E3779B9
LOG2E = 1.4426950408889634
GA = -2.0 * math.sqrt(2.0 / math.pi) * LOG2E
GB = GA * 0.044715


def fbits(x):
    return '0x%08x' % struct.unpack('<I', struct.pack('<f', x))[0]


class Regs:
    def __init__(self, kind, lo, hi):
        self.kind, self.cur, self.hi = kind, lo, hi

    def get(self, n=1, align=1):
        self.cur = (self.cur + align - 1) // align * align
        r = self.cur
        self.cur += n
        assert self.cur <= self.hi, f'out of {self.kind} registers'
        return r


def R(kind, base, n=1):
    return f'{kind}{base}' if n == 1 else f'{kind}[{base}:{base + n - 1}]'


def v(b, n=1): return R('v', b, n)
def a(b, n=1): return R('a', b, n)
def s(b, n=1): return R('s', b, n)


sX, sWQ, sWI, sWS, sSP, sWO, sWOUT, sOUT, sPHI, sBSP, sGW = 4, 8, 12, 16, 20, 24, 28, 32, 36, 40, 44
s_rb, s_ch, s_jj, s_w, s_cb, s_head = 48, 49, 50, 51, 52, 53
s_tag = 54
s_wP, s_w2k, s_w4k = 58, 59, 60
s_4k = 61
s_t0, s_t1, s_t2, s_t3 = 62, 63, 64, 65
s_spo, s_z2o = 66, 67
s_cnt = 68
s_z2b = 69
s_L, s_mask = 70, 72
s_xo, s_wio, s_wqo = 74, 81, 88
s_ts = 96


class Gen:
    def __init__(self, cfg):
        self.cfg = cfg
        self.tail = []
        self.nlab = 0

    def stamp(self, P, idx):
        if not self.cfg.get('stamps'):
            return
        assert not P.seg
        P.raw(f's_memrealtime {s(s_ts, 2)}')
        P.raw('s_waitcnt lgkmcnt(0)')
        P.drain(vm=False)
        P.raw(f'v_writelane_b32 {v(self.vTS)}, {s(s_ts)}, {idx}')

    def stamp_flush(self, P):
        if not self.cfg.get('stamps'):
            return
        t = self.vTS + 1
        P.raw(f'v_mbcnt_lo_u32_b32 {v(t)}, -1, 0')
        P.raw(f'v_mbcnt_hi_u32_b32 {v(t)}, -1, {v(t)}')
        P.raw(f'v_lshlrev_b32 {v(t)}, 2, {v(t)}')
        P.raw(f's_lshl_b32 {s(s_t0)}, s2, 2')
        P.raw(f's_add_u32 {s(s_t0)}, {s(s_t0)}, {s(s_w)}')
        P.raw(f's_lshl_b32 {s(s_t0)}, {s(s_t0)}, 8')
        P.raw(f's_add_u32 {s(s_t0)}, {s(s_t0)}, {WS_TS}')
        P.raw(f'buffer_store_dword {v(self.vTS)}, {v(t)}, {s(sWS, 4)}, {s(s_t0)} offen')

    def poll(self, P, name, loads, check, first_in_seg=True):
        self.nlab += 1
        ls, lb = f'Lslow_{name}_{self.nlab}', f'Lback_{name}_{self.nlab}'
        P.raw(f's_cbranch_vccnz {ls}')
        P.raw(lb + ':')
        T = [ls + ':', f'  s_mov_b32 {s(s_cnt)}, 0', ls + '_l:', '  s_nop 7', '  s_nop 7']
        T += ['  ' + x for x in loads]
        T += ['  s_waitcnt vmcnt(0)']
        for x in check:
            T += ['  ' + x, '  s_nop 1']
        T += [f'  s_cbranch_vccz {ls}_d', f'  s_add_u32 {s(s_cnt)}, {s(s_cnt)}, 1',
              f'  s_cmp_lt_u32 {s(s_cnt)}, 20000', f'  s_cbranch_scc1 {ls}_l', ls + '_d:', '  s_nop 4', f'  s_branch {lb}']
        self.tail += T

    def prologue(self, P):
        I = P.raw
        I('s_cmp_ge_u32 s2, 256')
        I('s_cbranch_scc1 Lexit')
        for srd, off in ((sX, 0), (sWI, 40), (sWQ, 8), (sWS, 96), (sSP, 48), (sPHI, 16), (sGW, 72), (sBSP, 56),
                         (sWO, 24), (sWOUT, 64), (sOUT, 80)):
            I(f's_load_dwordx2 {s(srd, 2)}, s[0:1], {off}')
        I(f'v_lshrrev_b32 v1, 6, v0')
        I(f's_and_b32 {s(s_ch)}, s2, 1')
        I(f'v_readfirstlane_b32 {s(s_w)}, v1')
        I(f's_bfe_u32 {s(s_t0)}, s2, 0x20001')
        I(f's_bfe_u32 {s(s_t1)}, s2, 0x20003')
        I(f's_lshl2_add_u32 {s(s_rb)}, {s(s_t0)}, {s(s_t1)}')
        I(f's_lshr_b32 {s(s_jj)}, s2, 5')
        I(f's_lshl3_add_u32 {s(s_head)}, {s(s_ch)}, {s(s_jj)}')
        I(f's_sub_u32 {s(s_cb)}, {s(s_head)}, {s(s_ch)}')
        I(f'v_and_b32 v0, 63, v0')
        for srd, nb in ((sX, 2048 * 896), (sWI, 448 * 3584), (sWQ, 448 * 2688), (sWS, WS_SIZE)):
            I(f's_mov_b32 {s(srd + 2)}, {nb}')
            I(f's_mov_b32 {s(srd + 3)}, 0x20000')
        I(f's_lshl_b32 {s(s_wP)}, {s(s_w)}, 14')
        I(f's_lshl_b32 {s(s_w2k)}, {s(s_w)}, 11')
        I(f's_lshl1_add_u32 {s(s_t0)}, {s(s_t1)}, {s(s_jj)}')
        for c in range(7):
            if c:
                I(f's_add_u32 {s(s_t0)}, {s(s_t0)}, 1')
            I(f's_sub_u32 {s(s_t1)}, {s(s_t0)}, 7')
            I(f's_min_u32 {s(s_t0)}, {s(s_t0)}, {s(s_t1)}')
            I(f's_lshl_b32 {s(s_xo + c)}, {s(s_t0)}, 7')
            I(f's_mul_i32 {s(s_wio + c)}, {s(s_xo + c)}, 1792')

    def rest_srds(self, P):
        I = P.I
        for srd, nb in ((sSP, 2048 * 4096), (sPHI, 16 * 1568), (sGW, 896), (sBSP, 4096), (sWO, 448 * 896),
                        (sWOUT, 896 * 896), (sOUT, 2048 * 896)):
            I(f's_mov_b32 {s(srd + 2)}, {nb}')
            I(f's_mov_b32 {s(srd + 3)}, 0x20000')
        for c in range(7):
            I(f's_mul_i32 {s(s_wqo + c)}, {s(s_xo + c)}, 1344')
        I(f's_lshl_b32 {s(s_w4k)}, {s(s_w)}, 12')
        I(f's_movk_i32 {s(s_4k)}, 0x1000')
        I(f's_mov_b32 {s(s_L)}, {fbits(LOG2E)}')

    def rowdma_offsets(self, I, dst, stride, t0, t1):
        I(f's_lshl2_add_u32 {s(s_t0)}, {s(s_rb)}, {s(s_w)}')
        I(f's_mul_i32 {s(s_t0)}, {s(s_t0)}, {32 * stride}')
        I(f'v_lshrrev_b32 {v(t0)}, 3, v0')
        I(f'v_mul_u32_u24 {v(t0)}, {stride}, {v(t0)}')
        I(f'v_add_u32 {v(t0)}, {s(s_t0)}, {v(t0)}')
        I(f'v_lshrrev_b32 {v(t1)}, 4, v0')
        I(f'v_xor_b32 {v(t1)}, v0, {v(t1)}')
        I(f'v_and_b32 {v(t1)}, 7, {v(t1)}')
        I(f'v_lshl_add_u32 {v(dst)}, {v(t1)}, 4, {v(t0)}')
        I(f'v_xor_b32 {v(t1)}, 64, {v(dst)}')
        I(f'v_add_u32 {v(dst + 1)}, {8 * stride - 1024}, {v(t1)}')
        I(f'v_add_u32 {v(dst + 2)}, {16 * stride - 2048}, {v(dst)}')
        I(f'v_add_u32 {v(dst + 3)}, {24 * stride - 3072}, {v(t1)}')

    def wdma_offsets(self, I, dst, stride, scol, t0, t1):
        I(f's_mul_i32 {s(s_t0)}, {s(s_w)}, {16 * stride}')
        I(f's_add_u32 {s(s_t0)}, {s(s_t0)}, {s(scol)}')
        I(f'v_lshrrev_b32 {v(t0)}, 3, v0')
        I(f'v_mul_u32_u24 {v(t0)}, {stride}, {v(t0)}')
        I(f'v_add_u32 {v(t0)}, {s(s_t0)}, {v(t0)}')
        I(f'v_lshrrev_b32 {v(t1)}, 2, v0')
        I(f'v_and_b32 {v(t1)}, 4, {v(t1)}')
        I(f'v_xor_b32 {v(t1)}, v0, {v(t1)}')
        I(f'v_and_b32 {v(t1)}, 7, {v(t1)}')
        I(f'v_lshl_add_u32 {v(dst)}, {v(t1)}, 4, {v(t0)}')
        I(f'v_add_u32 {v(dst + 1)}, {8 * stride - 1024}, {v(dst)}')

    def kvdma_offsets(self, I, dst, t0, t1):
        I(f's_mul_i32 {s(s_t0)}, {s(s_w)}, {16 * 2688}')
        I(f's_mul_i32 {s(s_t1)}, {s(s_head)}, 56')
        I(f's_add_u32 {s(s_t0)}, {s(s_t0)}, {s(s_t1)}')
        I(f's_addk_i32 {s(s_t0)}, 896')
        I(f'v_lshrrev_b32 {v(t0)}, 2, v0')
        I(f'v_mul_u32_u24 {v(t0)}, 2688, {v(t0)}')
        I(f'v_add_u32 {v(t0)}, {s(s_t0)}, {v(t0)}')
        I(f'v_and_b32 {v(t1)}, 3, v0')
        I(f'v_lshl_add_u32 {v(dst)}, {v(t1)}, 4, {v(t0)}')
        I(f'v_subrev_u32 {v(dst + 1)}, 128, {v(dst)}')

    def xread_addrs(self, I, dst, t0, t1):
        I(f'v_and_b32 {v(t0)}, 31, v0')
        I(f'v_lshlrev_b32 {v(t0)}, 7, {v(t0)}')
        I(f'v_add_u32 {v(t0)}, {s(s_wP)}, {v(t0)}')
        I(f'v_bfe_u32 {v(t1)}, v0, 1, 3')
        I(f'v_lshrrev_b32 {v(dst)}, 5, v0')
        I(f'v_xor_b32 {v(t1)}, {v(t1)}, {v(dst)}')
        I(f'v_lshl_add_u32 {v(dst)}, {v(t1)}, 4, {v(t0)}')
        for k in range(1, 4):
            I(f'v_xor_b32 {v(dst + k)}, {32 * k}, {v(dst)}')

    def tr_common(self, I, t_r, t_c, t_h):
        I(f'v_bfe_u32 {v(t_r)}, v0, 2, 2')
        I(f'v_and_b32 {v(t_c)}, 3, v0')
        I(f'v_lshlrev_b32 {v(t_c)}, 3, {v(t_c)}')
        I(f'v_and_b32 {v(t_h)}, 16, v0')
        I(f'v_lshl_add_u32 {v(t_c)}, {v(t_h)}, 1, {v(t_c)}')
        I(f'v_lshrrev_b32 {v(t_h)}, 5, v0')

    def tr128_addrs(self, I, dst, base, hshift, t_r, t_c, t_h, t0):
        I(f'v_lshl_add_u32 {v(t0)}, {v(t_h)}, {hshift}, {v(t_r)}')
        I(f'v_lshl_add_u32 {v(dst)}, {v(t0)}, 7, {v(t_c)}')
        I(f'v_and_b32 {v(t0)}, 2, {v(t_r)}')
        I(f'v_lshl_add_u32 {v(dst)}, {v(t0)}, 5, {v(dst)}')
        I(f'v_add_u32 {v(dst)}, {base}, {v(dst)}')
        I(f'v_xor_b32 {v(dst + 1)}, 64, {v(dst)}')

    def tr64_addr(self, I, dst, base, hshift, t_r, t_c, t_h, t0):
        I(f'v_lshl_add_u32 {v(t0)}, {v(t_h)}, {hshift}, {v(t_r)}')
        I(f'v_lshl_add_u32 {v(dst)}, {v(t0)}, 6, {v(t_c)}')
        I(f'v_add_u32 {v(dst)}, {base}, {v(dst)}')

    def timg_waddrs(self, I, dst, t0, t1):
        I(f'v_lshrrev_b32 {v(t0)}, 3, v0')
        I(f'v_and_b32 {v(t0)}, 4, {v(t0)}')
        I(f'v_xor_b32 {v(t0)}, v0, {v(t0)}')
        I(f'v_lshlrev_b32 {v(t0)}, 4, {v(t0)}')
        I(f's_add_u32 {s(s_t0)}, {s(s_w4k)}, {LM_T}')
        I(f'v_add_u32 {v(dst)}, {s(s_t0)}, {v(t0)}')
        I(f'v_xor_b32 {v(dst + 1)}, {1024 + 128}, {v(dst)}')

    def timg_raddrs(self, I, dst, base, hbit, tbit, t0, t1):
        I(f'v_bfe_u32 {v(t0)}, v0, 4, 1')
        I(f'v_and_b32 {v(t1)}, 1, v0')
        I(f'v_lshl_add_u32 {v(t0)}, {v(t0)}, 1, {v(t1)}')
        I(f'v_lshrrev_b32 {v(t1)}, 5, v0')
        I(f'v_lshlrev_b32 {v(t1)}, {hbit - 2}, {v(t1)}')
        I(f'v_xor_b32 {v(t1)}, {v(t1)}, {v(t0)}')
        I(f'v_lshlrev_b32 {v(dst)}, 9, {v(t0)}')
        I(f'v_lshl_add_u32 {v(dst)}, {v(t1)}, 6, {v(dst)}')
        I(f'v_and_b32 {v(t0)}, 14, v0')
        I(f'v_lshl_add_u32 {v(dst)}, {v(t0)}, 2, {v(dst)}')
        I(f'v_add_u32 {v(dst)}, {base}, {v(dst)}')
        I(f'v_xor_b32 {v(dst + 1)}, {16 << tbit}, {v(dst)}')

    def phi_dma_offset(self, I, dst, t0, t1):
        I(f'v_bfe_u32 {v(t0)}, v0, 2, 2')
        I(f'v_and_b32 {v(t1)}, 1, v0')
        I(f'v_lshl_add_u32 {v(t0)}, {v(t0)}, 1, {v(t1)}')
        I(f'v_cmp_eq_u32 vcc, 7, {v(t0)}')
        I(f'v_bfe_u32 {v(t1)}, v0, 1, 1')
        I(f'v_mad_u32_u24 {v(t0)}, {v(t1)}, 7, {v(t0)}')
        I(f'v_lshrrev_b32 {v(t1)}, 4, v0')
        I(f'v_mad_u32_u24 {v(t0)}, {v(t1)}, 14, {v(t0)}')
        I(f'v_lshlrev_b32 {v(t0)}, 2, {v(t0)}')
        I(f'v_mov_b32 {v(t1)}, {OOB}')
        I(f'v_cndmask_b32 {v(dst)}, {v(t0)}, {v(t1)}, vcc')
        I(f's_cmp_eq_u32 {s(s_w)}, 3')
        I(f's_cselect_b32 {s(s_t2)}, {OOB}, 0')
        I(f'v_or_b32 {v(dst + 1)}, {s(s_t2)}, {v(dst)}')

    def phi_dma(self, I, voff, shead, ldsbase, tag, **kw):
        I(f's_mul_i32 {s(s_t1)}, {s(s_w)}, 448')
        I(f's_add_u32 {s(s_t1)}, {s(s_t1)}, {s(shead)}')
        I(f's_lshl_b32 {s(s_t2)}, {s(s_w)}, 9')
        I(f's_add_u32 m0, {s(s_t2)}, {ldsbase}')
        I(f'buffer_load_dword {v(voff)}, {s(sPHI, 4)}, {s(s_t1)} offen lds', lrd=[tag + '.f'], lwr=[tag + '.w'], **kw)
        I(f's_add_u32 m0, {s(s_t2)}, {ldsbase + 256 - 224}')
        I(f'buffer_load_dword {v(voff + 1)}, {s(sPHI, 4)}, {s(s_t1)} offen offset:224 lds', lrd=[tag + '.f'], lwr=[tag + '.w'], **kw)

    def tag_setup(self, I, vE):
        I(f'v_readfirstlane_b32 {s(s_tag)}, {v(vE)}')
        I(f's_add_u32 {s(s_tag)}, {s(s_tag)}, {TAGC}')
        for k in range(1, 4):
            I(f's_lshr_b32 {s(s_tag + k)}, {s(s_tag)}, {8 * k}')

    def both_halves(self, I, op, A, B):
        I(f'v_permlane32_swap_b32 {v(A)}, {v(B)}')
        I(f'{op} {v(A)}, {v(A)}, {v(B)}')

    def spread(self, I, A, B):
        I(f'v_mov_b32 {v(B)}, {v(A)}')
        I(f'v_permlane32_swap_b32 {v(A)}, {v(B)}')

    def gelu(self, I, X, n, T, vC, pk, stats=None):
        for i in range(0, n, 2):
            t = T + (i % 8)
            x = X + i
            if pk:
                I(f'v_pk_mul_f32 {v(t, 2)}, {v(x, 2)}, {v(x, 2)}')
                I(f'v_pk_fma_f32 {v(t, 2)}, {v(t, 2)}, {v(vC, 2)}, {v(vC, 2)} op_sel:[0,1,0] op_sel_hi:[1,1,0]')
                I(f'v_pk_mul_f32 {v(t, 2)}, {v(t, 2)}, {v(x, 2)}')
            else:
                for e in range(2):
                    I(f'v_mul_f32 {v(t + e)}, {v(x + e)}, {v(x + e)}')
                    I(f'v_fma_f32 {v(t + e)}, {v(t + e)}, {v(vC + 1)}, {v(vC)}')
                    I(f'v_mul_f32 {v(t + e)}, {v(t + e)}, {v(x + e)}')
            for e in range(2):
                I(f'v_exp_f32 {v(t + e)}, {v(t + e)}')
            if pk:
                I(f'v_pk_add_f32 {v(t, 2)}, {v(t, 2)}, 1.0 op_sel_hi:[1,0]')
            else:
                for e in range(2):
                    I(f'v_add_f32 {v(t + e)}, 1.0, {v(t + e)}')
            for e in range(2):
                I(f'v_rcp_f32 {v(t + e)}, {v(t + e)}')
            if pk:
                I(f'v_pk_mul_f32 {v(x, 2)}, {v(x, 2)}, {v(t, 2)}')
            else:
                for e in range(2):
                    I(f'v_mul_f32 {v(x + e)}, {v(x + e)}, {v(t + e)}')
            if stats is not None:
                S, Q = stats
                if i == 0:
                    I(f'v_pk_mul_f32 {v(Q, 2)}, {v(x, 2)}, {v(x, 2)}')
                elif i == 2:
                    I(f'v_pk_add_f32 {v(S, 2)}, {v(X, 2)}, {v(x, 2)}')
                else:
                    I(f'v_pk_add_f32 {v(S, 2)}, {v(S, 2)}, {v(x, 2)}')
                if i:
                    I(f'v_pk_fma_f32 {v(Q, 2)}, {v(x, 2)}, {v(x, 2)}, {v(Q, 2)}')

    def softmax2(self, I, Pp, E, OUT, T, full_norm, Ssave=None):
        A, B = T, T + 1
        I(f'v_max3_f32 {v(A)}, {v(Pp)}, {v(Pp + 1)}, {v(Pp + 2)}')
        I(f'v_max3_f32 {v(B)}, -{v(Pp)}, -{v(Pp + 1)}, -{v(Pp + 2)}')
        for i in range(3, 13, 2):
            I(f'v_max3_f32 {v(A)}, {v(A)}, {v(Pp + i)}, {v(Pp + i + 1)}')
            I(f'v_max3_f32 {v(B)}, {v(B)}, -{v(Pp + i)}, -{v(Pp + i + 1)}')
        I(f'v_max_f32 {v(A)}, {v(A)}, {v(Pp + 13)}')
        I(f'v_max_f32_e64 {v(B)}, {v(B)}, -{v(Pp + 13)}')
        self.both_halves(I, 'v_max_f32', A, B)
        I(f'v_mul_f32 {v(A)}, {fbits(-LOG2E)}, {v(A)}')
        self.spread(I, A, B)
        for i in range(14):
            I(f'v_fma_f32 {v(E + i)}, {v(Pp + i)}, {s(s_L)}, {v(A)}')
            I(f'v_fma_f32 {v(E + 14 + i)}, -{v(Pp + i)}, {s(s_L)}, {v(B)}')
        for i in range(14):
            I(f'v_exp_f32 {v(E + i)}, {v(E + i)}')
            I(f'v_exp_f32 {v(E + 14 + i)}, {v(E + 14 + i)}')
        I(f'v_add_f32 {v(A)}, {v(E)}, {v(E + 1)}')
        I(f'v_add_f32 {v(B)}, {v(E + 14)}, {v(E + 15)}')
        for i in range(2, 14):
            I(f'v_add_f32 {v(A)}, {v(A)}, {v(E + i)}')
            I(f'v_add_f32 {v(B)}, {v(B)}, {v(E + 14 + i)}')
        self.both_halves(I, 'v_add_f32', A, B)
        if full_norm:
            I(f'v_rcp_f32 {v(A)}, {v(A)}')
            self.spread(I, A, B)
            for i in range(14):
                I(f'v_mul_f32 {v(E + i)}, {v(E + i)}, {v(A)}')
        else:
            self.spread(I, A, B)
            I(f'v_rcp_f32 {v(B)}, {v(B)}')
            I(f'v_mov_b32 {v(Ssave)}, {v(A)}')
            I(f'v_mul_f32 {v(B)}, {v(B)}, {v(A)}')
        for i in range(14):
            I(f'v_mul_f32 {v(E + 14 + i)}, {v(E + 14 + i)}, {v(B)}')
        for sg in range(2):
            for i in range(7):
                I(f'v_cvt_pk_bf16_f32 {v(OUT + 8 * sg + i)}, {v(E + 14 * sg + 2 * i)}, {v(E + 14 * sg + 2 * i + 1)}')
            I(f'v_mov_b32 {v(OUT + 8 * sg + 7)}, 0')

    def pack(self, I, dst, src, n):
        for i in range(n // 2):
            I(f'v_cvt_pk_bf16_f32 {v(dst + i)}, {v(src + 2 * i)}, {v(src + 2 * i + 1)}')

    class FragRing:
        def __init__(self, kind, base, n):
            self.kind, self.base, self.n, self.k = kind, base, n, 0

        def next(self):
            r = self.base + 4 * (self.k % self.n)
            self.k += 1
            return r

    def trfrag(self, I, ring, addr, off, tstep, tag, reg=None, kind=None, addr2=None, **kw):
        r = ring.next() if reg is None else reg
        kd = ring.kind if kind is None else kind
        I(f'ds_read_b64_tr_b16 {R(kd, r, 2)}, {v(addr)} offset:{off}', lrd=[tag], **kw)
        last = I(f'ds_read_b64_tr_b16 {R(kd, r + 2, 2)}, {v(addr if addr2 is None else addr2)} offset:{off + tstep}', lrd=[tag], **kw)
        return R(kd, r, 4), last

    def mfma(self, I, D, A, B, C=None, **kw):
        c = v(D, 16) if C is None else C
        return I(f'v_mfma_f32_32x32x16_bf16 {v(D, 16)}, {A}, {B}, {c}', **kw)

    def kv_tail_a(self, P, r):
        I = P.I
        self.pack(I, r.KP, r.K, 16)
        self.pack(I, r.VP, r.V, 16)
        for i in range(8):
            I(f'v_cndmask_b32 {v(r.VP + i)}, {v(r.VP + i)}, {v(r.ONES)}, {s(s_mask, 2)}')
        for st in range(2):
            f, _ = self.trfrag(I, r.ring, r.TPH, r.phi_off + st * 1024, 512, 'PHI.v')
            self.mfma(I, r.PK, f, v(r.KP + 4 * st, 4), C='0' if st == 0 else None)
        for st in range(2):
            I(f'ds_write_b128 {v(r.VW)}, {v(r.VP + 4 * st, 4)} offset:{st * 1024}', lrd=['VF.f'], lwr=['VF.w'])
        self.softmax2(I, r.PK, r.E, r.PK, r.T2, True)
        for sg in range(2):
            for p in range(2):
                I(f'ds_write_b128 {v(r.TW + p)}, {v(r.PK + 8 * sg + 4 * p, 4)} offset:{sg * 2048}', lrd=['TI.f'], lwr=['TI.w'])

    def kv_tail_b(self, P, r):
        I = P.I
        for wv in range(4):
            for st in range(2):
                fa, _ = self.trfrag(I, r.ring, r.TRK, wv * 4096 + st * 256, 0, 'TI.v', addr2=r.TRK + 1)
                fb = r.ring.next()
                I(f'ds_read_b128 {R(r.ring.kind, fb, 4)}, {v(r.VR)} offset:{wv * 2048 + st * 1024}', lrd=['VF.v'])
                self.mfma(I, r.KVA, fa, R(r.ring.kind, fb, 4), C='0' if wv == 0 and st == 0 else None)
        for i in range(16):
            I(f'v_bfi_b32 {v(r.KVA + i)}, {v(r.FF)}, {s(s_tag + (i & 3))}, {v(r.KVA + i)}')
        for q in range(4):
            I(f's_add_u32 {s(s_t0)}, {s(r.s_kvp)}, {q * 16384}')
            I(f'buffer_store_dwordx4 {v(r.KVA + 4 * q, 4)}, {v(r.KVW)}, {s(sWS, 4)}, {s(s_t0)} offen sc1')

    def kv_setup(self, I, r, t0, t1, t_r, t_c, t_h, phibase):
        self.tr64_addr(I, r.TK, LW, 3, t_r, t_c, t_h, t0)
        self.tr64_addr(I, r.TPH, phibase, 2, t_r, t_c, t_h, t0)
        self.timg_waddrs(I, r.TW, t0, t1)
        I(f's_lshr_b32 {s(s_t1)}, {s(s_w)}, 1')
        I(f's_lshl_b32 {s(s_t2)}, {s(s_t1)}, 11')
        I(f's_add_u32 {s(s_t2)}, {s(s_t2)}, {LM_T}')
        self.timg_raddrs(I, r.TRK, s(s_t2), 2, 3, t0, t1)
        I(f'v_add_u32 {v(r.VR)}, {LM_V}, {v(r.L16)}')
        I(f'v_add_u32 {v(r.VW)}, {s(s_w2k)}, {v(r.VR)}')
        I(f'v_mov_b32 {v(r.ONES)}, 0x3f803f80')
        I(f'v_mov_b32 {v(r.FF)}, 0xff')
        I(f'v_and_b32 {v(t0)}, 31, v0')
        I(f'v_cmp_eq_u32 {s(s_mask, 2)}, 28, {v(t0)}')
        I(f's_lshl1_add_u32 {s(s_t1)}, {s(s_head)}, {s(s_t1)}')
        I(f's_lshl_b32 {s(s_t1)}, {s(s_t1)}, 6')
        I(f's_add_u32 {s(s_t1)}, {s(s_t1)}, {s(s_rb)}')
        I(f's_lshl_b32 {s(s_t1)}, {s(s_t1)}, 10')
        I(f's_add_u32 {s(r.s_kvp)}, {s(s_t1)}, {WS_KVP}')
        I(f's_and_b32 {s(s_t1)}, {s(s_w)}, 1')
        I(f's_lshl_b32 {s(s_t1)}, {s(s_t1)}, 30')
        I(f'v_or_b32 {v(r.KVW)}, {s(s_t1)}, {v(r.L16)}')

    def flag_store(self, I, vflag, vtag, tagname, **kw):
        return I(f'buffer_store_dword {v(vtag)}, {v(vflag)}, {s(sWS, 4)}, 0 offen sc1', lrd=[tagname + '.v'], **kw)

    def lane0_only(self, I, dst, soff, t0):
        I(f'v_or_b32 {v(t0)}, {s(s_w)}, v0')
        I(f'v_cmp_eq_u32 vcc, 0, {v(t0)}')
        I(f'v_mov_b32 {v(t0)}, {s(soff)}')
        I(f'v_mov_b32 {v(dst)}, {OOB}')
        I(f'v_cndmask_b32 {v(dst)}, {v(dst)}, {v(t0)}, vcc')

    def main_prog(self, P):
        cfg = self.cfg
        I = P.I
        V = Regs('v', 1, 256)

        class r: pass
        t0, t1, t2, t3, t4 = (V.get() for _ in range(5))
        self.vTS = V.get(2)
        r.XO = V.get(4); r.SO = V.get(4); r.WO = V.get(2); r.KO = V.get(2)
        r.XR = V.get(4); r.TR = V.get(2); r.TK = V.get(); r.TPH = V.get()
        r.L16 = V.get(); r.LIN = V.get(); r.ZR = V.get()
        r.TW = V.get(2); r.TRK = V.get(2); r.TRZ = V.get(2); r.VR = V.get(); r.VW = V.get()
        r.ONES = V.get(); r.FF = V.get(); r.PHO = V.get(2); r.EP = V.get(); r.BS = V.get(); r.KVW = V.get()
        r.STW = V.get(); r.FZW = V.get(); r.FZR = V.get(); r.PL = V.get(); r.TAG = V.get()
        r.C = V.get(2, 2); r.T2 = V.get(2, 2); r.GT = V.get(8, 2)
        r.ST = V.get(4, 4)
        base = V.get(0, 16)
        assert base == 80, base
        r.Z = 80; r.K = 80; r.V = 96
        r.U = 112
        r.KP, r.VP, r.PK, r.E = 144, 152, 160, 176
        r.KVA = 176
        r.SG = 176
        r.ZP = 144
        r.ZF = 160
        r.s_kvp = 95
        r.phi_off = 0
        XF = 0
        r.ring = self.FragRing('a', 112, 8)
        slots = [('a', 144 + 16 * i) for i in range(7)] + [('v', 208 + 16 * i) for i in range(3)] + \
                [('a', 16 * i) for i in range(7)] + [('v', 144 + 16 * i) for i in range(4)]
        NS = len(slots)

        Iraw = P.raw
        self.rowdma_offsets(Iraw, r.XO, 896, t0, t1)
        Iraw(f's_lshl_b32 {s(s_t3)}, {s(s_cb)}, 7')
        self.wdma_offsets(Iraw, r.WO, 3584, s_t3, t0, t1)
        Iraw(f'v_mov_b32 {v(t0)}, 0')
        if cfg.get('stamps'):
            Iraw(f'v_mov_b32 {v(self.vTS)}, 0')
        Iraw('s_waitcnt lgkmcnt(0)')
        self.stamp(P, 0)

        st = type('S', (), {})()
        st.pslot = 0
        st.wslot = 0
        st.busy = set()

        def dma_private(off, srd, soff, lat=None):
            p = st.pslot % 4
            st.pslot += 1
            I(f's_add_u32 m0, {s(s_wP)}, {LP + p * 4096}')
            for g in range(4):
                I(f'buffer_load_dwordx4 {v(off + g)}, {s(srd, 4)}, {s(soff)} offen offset:{1024 * g} lds', lwr=[f'P{p}'], lat=lat)
            return p

        def read_private(p, kind, base, **kw):
            for k in range(4):
                I(f'ds_read_b128 {R(kind, base + 4 * k, 4)}, {v(r.XR + k)} offset:{p * 4096}', lrd=[f'P{p}'], **kw)

        def dma_w(off, srd, soff, extra=0, lat=None):
            q = st.wslot % 8
            st.wslot += 1
            assert q not in st.busy, 'W slot busy'
            st.busy.add(q)
            I(f's_add_u32 m0, {s(s_w2k)}, {LW + q * 8192 - extra}')
            for i in range(2):
                I(f'buffer_load_dwordx4 {v(off + i)}, {s(srd, 4)}, {s(soff)} offen offset:{1024 * i + extra} lds',
                  lrd=[f'W{q}.f'], lwr=[f'W{q}.w'], lat=lat)
            return q

        sp = type('S', (), {})()
        sp.issued = 0; sp.read = 0; sp.slot = {}; sp.limit = 10

        def sp_dma(lat=None):
            c = sp.issued
            if c >= 32: return
            if c - sp.read >= 4:
                sp_read()
            sp.slot[c] = dma_private(r.SO, sSP, s_spo, lat=lat or cfg.get('sp_lat', 1200))
            I(f's_addk_i32 {s(s_spo)}, 128')
            if c & 1:
                I(f's_and_b32 {s(s_spo)}, {s(s_spo)}, 0xfff')
            sp.issued += 1

        def sp_read():
            c = sp.read
            assert c < sp.limit, 'w_sp register slot still live'
            kd, b = slots[c % NS]
            read_private(sp.slot[c], kd, b, prio=5)
            sp.read += 1

        I(f'buffer_load_dword {v(r.EP)}, {v(t0)}, {s(sWS, 4)}, 0 offen sc1')
        xs, ws = {}, {}
        for c in range(4):
            xs[c] = dma_private(r.XO, sX, s_xo + c)
            ws[c] = dma_w(r.WO, sWI, s_wio + c, 1792)
        P.flush('first', reorder=False)
        self.xread_addrs(I, r.XR, t0, t1)
        self.tr_common(I, t2, t3, t4)
        self.tr128_addrs(I, r.TR, LW, 3, t2, t3, t4, t0)
        self.rest_srds(P)
        self.kvdma_offsets(I, r.KO, t0, t1)
        I(f'v_lshlrev_b32 {v(r.L16)}, 4, v0')
        I(f'v_add_u32 {v(r.LIN)}, {s(s_w4k)}, {v(r.L16)}')
        I(f'v_add_u32 {v(r.ZR)}, {LW}, {v(r.L16)}')
        self.kv_setup(I, r, t0, t1, t2, t3, t4, LM_PHI)
        I(f's_add_u32 {s(s_t2)}, {s(s_w4k)}, {LM_T}')
        self.timg_raddrs(I, r.TRZ, s(s_t2), 3, 2, t0, t1)
        self.phi_dma_offset(I, r.PHO, t0, t1)
        self.rowdma_offsets(I, r.SO, 4096, t0, t1)
        I(f'v_mov_b32 {v(r.C)}, {fbits(GA)}')
        I(f'v_mov_b32 {v(r.C + 1)}, {fbits(GB)}')
        s_stb = 98
        I(f's_lshl2_add_u32 {s(s_t0)}, {s(s_rb)}, {s(s_w)}')
        I(f's_mul_i32 {s(s_t0)}, {s(s_t0)}, 7168')
        I(f's_add_u32 {s(s_stb)}, {s(s_t0)}, {WS_STATS}')
        I(f's_add_u32 {s(s_stb + 1)}, {s(s_stb)}, 4096')
        I(f's_lshl_b32 {s(s_t0)}, {s(s_cb)}, 9')
        I(f'v_add_u32 {v(t0)}, {s(s_t0)}, {v(r.L16)}')
        I(f'v_lshlrev_b32 {v(t1)}, 30, {v(t4)}')
        I(f'v_add_u32 {v(r.STW)}, {v(t0)}, {v(t1)}')
        I(f's_lshl4_add_u32 {s(s_t0)}, {s(s_cb)}, {s(s_rb)}')
        I(f's_lshl_b32 {s(s_z2b)}, {s(s_t0)}, 14')
        I(f's_add_u32 {s(s_z2b)}, {s(s_z2b)}, {WS_Z2}')
        I(f's_lshl_b32 {s(s_t0)}, {s(s_t0)}, 7')
        I(f's_add_u32 {s(s_t0)}, {s(s_t0)}, {WS_FZ}')
        self.lane0_only(I, r.FZW, s_t0, t0)
        I(f's_lshl_b32 {s(s_t0)}, {s(s_cb)}, 11')
        I(f's_add_u32 {s(s_t0)}, {s(s_t0)}, {WS_FZ}')
        I(f'v_and_b32 {v(t0)}, 15, v0')
        I(f'v_lshlrev_b32 {v(t0)}, 7, {v(t0)}')
        I(f'v_add_u32 {v(r.FZR)}, {s(s_t0)}, {v(t0)}')
        I(f's_and_b32 {s(s_t0)}, {s(s_rb)}, 3')
        I(f's_mul_i32 {s(s_t0)}, {s(s_t0)}, {cfg.get("rot_rb", 0)}')
        I(f's_mul_i32 {s(s_t1)}, {s(s_jj)}, {cfg.get("rot_jj", 2)}')
        I(f's_add_u32 {s(s_t0)}, {s(s_t0)}, {s(s_t1)}')
        I(f's_and_b32 {s(s_t0)}, {s(s_t0)}, 15')
        I(f's_lshl_b32 {s(s_spo)}, {s(s_t0)}, 8')
        I(f's_lshl_b32 {s(s_z2o)}, {s(s_t0)}, 14')
        P.flush('setup', reorder=False)

        kvs, zs = {}, {}
        later = [('kv', c) for c in range(7)] + [('phi', 0), ('bsp', 0)] + [('z', c) for c in range(7)]

        def next_w():
            if not later: return False
            k, c = later.pop(0)
            if k == 'kv': kvs[c] = dma_w(r.KO, sWQ, s_wqo + c)
            elif k == 'z': zs[c] = dma_w(r.WO, sWI, s_wio + c)
            elif k == 'phi':
                I(f's_mul_i32 {s(s_t3)}, {s(s_head)}, 1568')
                self.phi_dma(I, r.PHO, s_t3, LM_PHI, 'PHI')
                return next_w()
            elif k == 'bsp':
                I(f's_lshl2_add_u32 {s(s_t0)}, {s(s_rb)}, {s(s_w)}')
                I(f's_lshl_b32 {s(s_t0)}, {s(s_t0)}, 6')
                I(f'v_and_b32 {v(r.BS)}, 31, v0')
                I(f'v_lshlrev_b32 {v(r.BS)}, 1, {v(r.BS)}')
                I(f'buffer_load_ushort {v(r.BS)}, {v(r.BS)}, {s(sBSP, 4)}, {s(s_t0)} offen')
                return next_w()
            return True

        pend = []
        lastrd = [None]

        def stage_barrier(q, pub=(), rel=()):
            relq = []
            if len(pend) >= 2:
                st.busy.discard(pend[0])
                relq = [f'W{pend.pop(0)}']
            P.barrier(publish=[f'W{q}'] + list(pub), release=relq + list(rel), after=[lastrd[0]])
            pend.append(q)
            return bool(relq)

        for c in range(7):
            read_private(xs[c], 'a', XF + 16 * c)
            stage_barrier(ws[c])
            if c + 4 < 7:
                xs[c + 4] = dma_private(r.XO, sX, s_xo + c + 4)
                ws[c + 4] = dma_w(r.WO, sWI, s_wio + c + 4, 1792)
            else:
                next_w()
            for ks in range(4):
                for nt in range(2):
                    f, lastrd[0] = self.trfrag(I, r.ring, r.TR + nt, ws[c] * 8192 + ks * 2048, 512, f'W{ws[c]}.v')
                    self.mfma(I, r.U + 16 * nt, f, a(XF + 16 * c + 4 * ks, 4), C='0' if c == 0 and ks == 0 else None)
        self.tag_setup(I, r.EP)
        I(f'v_mov_b32 {v(r.TAG)}, {s(s_tag)}')
        I(f'v_mov_b32 {v(r.ST + 2)}, {s(s_tag)}')
        I(f'v_mov_b32 {v(r.ST + 3)}, {s(s_tag)}')
        P.flush('u')
        self.stamp(P, 1)
        next_w(); next_w()
        for _ in range(cfg.get('sp_a', 2)): sp_dma()
        self.gelu(I, r.U, 32, r.GT, r.C, True, stats=(r.ST, r.T2))
        I(f'v_add_f32 {v(r.ST)}, {v(r.ST)}, {v(r.ST + 1)}')
        I(f'v_add_f32 {v(r.ST + 1)}, {v(r.T2)}, {v(r.T2 + 1)}')
        self.both_halves(I, 'v_add_f32', r.ST, r.ST + 1)
        self.spread(I, r.ST, r.ST + 1)
        I(f'buffer_store_dwordx4 {v(r.ST, 4)}, {v(r.STW)}, {s(sWS, 4)}, {s(s_stb)} offen sc1')
        P.flush('gelu_u')
        self.stamp(P, 2)

        st_loads = [f'buffer_load_dwordx4 {v(r.SG + 4 * q, 4)}, {v(r.L16)}, {s(sWS, 4)}, {s(s_stb + (q >> 2))} offen offset:{1024 * (q & 3)} sc1'
                    for q in range(7)]
        st_check = [f'v_xor_b32 {v(r.PL)}, {s(s_tag)}, {v(r.SG + 2)}'] + \
                   [f'v_bitop3_b32 {v(r.PL)}, {v(r.SG + 4 * q + 2)}, {s(s_tag)}, {v(r.PL)} bitop3:0xbe' for q in range(1, 7)] + \
                   [f'v_cmp_ne_u32 vcc, 0, {v(r.PL)}']
        for c in range(7):
            stage_barrier(kvs[c], pub=['PHI'] if c == 6 else [])
            next_w()
            if c < cfg.get('sp_b', 3): sp_dma()
            if c == cfg.get('st_at', 4):
                for x in st_loads: I(x, lat=1200)
            for ks in range(4):
                o = kvs[c] * 8192 + ks * 2048
                first = '0' if c == 0 and ks == 0 else None
                f, _ = self.trfrag(I, r.ring, r.TK, o, 256, f'W{kvs[c]}.v')
                self.mfma(I, r.K, f, a(XF + 16 * c + 4 * ks, 4), C=first)
                f, lastrd[0] = self.trfrag(I, r.ring, r.TK, o + 1024, 256, f'W{kvs[c]}.v')
                self.mfma(I, r.V, a(XF + 16 * c + 4 * ks, 4), f, C=first)
        P.flush('kv')
        for x in st_check: I(x)
        P.flush('stchk', reorder=False)
        self.poll(P, 'stats', st_loads, st_check)
        self.stamp(P, 3)

        S, Q = r.T2, r.T2 + 1
        I(f'v_pk_add_f32 {v(S, 2)}, {v(r.SG, 2)}, {v(r.SG + 4, 2)}')
        for q in range(2, 7):
            I(f'v_pk_add_f32 {v(S, 2)}, {v(S, 2)}, {v(r.SG + 4 * q, 2)}')
        self.both_halves(I, 'v_add_f32', S, Q)
        I(f'v_mul_f32 {v(S)}, {fbits(1.0 / 896)}, {v(S)}')
        self.spread(I, S, Q)
        I(f'v_fma_f32 {v(Q)}, -{v(S)}, {v(S)}, {v(Q)}')
        I(f'v_max_f32 {v(Q)}, 0, {v(Q)}')
        I(f'v_add_f32 {v(Q)}, {fbits(1e-5)}, {v(Q)}')
        I(f'v_rsq_f32 {v(Q)}, {v(Q)}')
        I(f'v_mul_f32_e64 {v(S)}, -{v(S)}, {v(Q)}')
        for i in range(0, 32, 2):
            I(f'v_pk_fma_f32 {v(r.U + i, 2)}, {v(r.U + i, 2)}, {v(S, 2)}, {v(S, 2)} op_sel:[0,1,0] op_sel_hi:[1,1,0]')
        self.pack(I, r.ZP, r.U, 32)
        for nt in range(2):
            for p in range(2):
                I(f'ds_write_b128 {v(r.TW + p)}, {v(r.ZP + 8 * nt + 4 * p, 4)} offset:{nt * 2048}', lwr=['TI.w'])
        for sx in range(2):
            for nt in range(2):
                k = 2 * sx + nt
                self.trfrag(I, None, r.TRZ, nt * 2048 + sx * 256, 0, 'TI.w', reg=r.ZF + 4 * k, kind='v', addr2=r.TRZ + 1)
                I(f'buffer_store_dwordx4 {v(r.ZF + 4 * k, 4)}, {v(r.LIN)}, {s(sWS, 4)}, {s(s_z2b)} offen offset:{1024 * k} sc1',
                  lwr=['Z2S.w'], lat=cfg.get('st_lat', 1800))
        P.flush('norm')
        self.stamp(P, 4)

        P.cur_prio = 3
        self.kv_tail_a(P, r)
        P.cur_prio = 0
        for c in range(7):
            pub = []
            if c == cfg.get('kvb_at', 5): pub += ['TI', 'VF']
            if c == cfg.get('zf_at', 6): pub += ['Z2S']
            stage_barrier(zs[c], pub=pub)
            if 'Z2S' in pub:
                self.flag_store(I, r.FZW, r.TAG, 'Z2S')
            next_w()
            if c < cfg.get('sp_c', 6): sp_dma()
            for ks in range(4):
                for nt in range(2):
                    f, lastrd[0] = self.trfrag(I, r.ring, r.TR + nt, zs[c] * 8192 + ks * 2048, 512, f'W{zs[c]}.v')
                    self.mfma(I, r.Z + 16 * nt, f, a(XF + 16 * c + 4 * ks, 4), C='0' if c == 0 and ks == 0 else None)
        self.kv_tail_b(P, r)
        sp.limit = NS
        G = r.U
        I(f'v_lshlrev_b32 {v(r.BS)}, 16, {v(r.BS)}')
        for i in range(32):
            I(f'v_mov_b32 {v(G + i)}, {v(r.BS)}', prio=8)
        for _ in range(cfg.get('sp_d', 4)): sp_dma()
        fz_load = [f'buffer_load_dword {v(r.PL)}, {v(r.FZR)}, {s(sWS, 4)}, 0 offen sc1']
        fz_check = [f'v_cmp_ne_u32 vcc, {s(s_tag)}, {v(r.PL)}']
        I(fz_load[0])
        for _ in range(cfg.get('sp_e', 3)): sp_dma()
        P.barrier(release=[f'W{q}' for q in range(8)] + ['TI', 'VF', 'PHI'])
        pend.clear()
        P.flush('z1')
        self.stamp(P, 5)
        I(fz_check[0])
        P.flush('fzchk', reorder=False)
        self.poll(P, 'fz', fz_load, fz_check)
        self.stamp(P, 6)

        I(f's_lshl_b32 {s(s_z2b)}, {s(s_cb)}, 18')
        I(f's_add_u32 {s(s_z2b)}, {s(s_z2b)}, {WS_Z2}')
        I(f'v_add_u32 {v(r.LIN)}, {s(s_z2b)}, {v(r.LIN)}')
        r.W3O = r.WO; r.T3O = r.TR; r.T3H = r.TW; r.HW = r.KO; r.FHW = r.FZW; r.FHR = r.FZR; r.FOR = r.KO + 1
        r.T3P = r.TRK
        P.cur_prio = 6
        I(f's_lshl_b32 {s(s_t3)}, {s(s_jj)}, 7')
        self.wdma_offsets(I, r.W3O, 896, s_t3, t0, t1)
        s_kh, s_hb, s_ob, s_gb = 100, 99, 98, 95
        I(f's_lshr_b32 {s(s_kh)}, {s(s_w)}, 1')
        WO_IMG = 104 * 1024
        I(f's_mul_i32 {s(s_t1)}, {s(s_kh)}, {224 * 128}')
        I(f's_add_u32 {s(s_t1)}, {s(s_t1)}, {WO_IMG}')
        self.tr128_addrs(I, r.T3O, s(s_t1), 2, t2, t3, t4, t0)
        I(f'v_lshlrev_b32 {v(t0)}, 9, {v(t4)}')
        I(f'v_sub_u32 {v(r.T3P)}, {v(r.T3O)}, {v(t0)}')
        I(f'v_sub_u32 {v(r.T3P + 1)}, {v(r.T3O + 1)}, {v(t0)}')
        I(f's_mul_i32 {s(s_t1)}, {s(s_kh)}, {448 * 128}')
        self.tr128_addrs(I, r.T3H, s(s_t1), 2, t2, t3, t4, t0)
        I(f's_lshl2_add_u32 {s(s_t0)}, {s(s_rb)}, {s(s_w)}')
        I(f's_mul_i32 {s(s_t0)}, {s(s_t0)}, 14')
        I(f's_add_u32 {s(s_t0)}, {s(s_t0)}, {s(s_cb)}')
        I(f's_lshl_b32 {s(s_t0)}, {s(s_t0)}, 12')
        I(f's_add_u32 {s(s_t0)}, {s(s_t0)}, {WS_H}')
        I(f'v_add_u32 {v(r.HW)}, {s(s_t0)}, {v(r.L16)}')
        I(f's_lshl4_add_u32 {s(s_t0)}, {s(s_rb)}, {s(s_head)}')
        I(f's_lshl_b32 {s(s_t0)}, {s(s_t0)}, 7')
        I(f's_add_u32 {s(s_t0)}, {s(s_t0)}, {WS_FH}')
        self.lane0_only(I, r.FHW, s_t0, t0)
        I(f's_lshl1_add_u32 {s(s_t1)}, {s(s_rb)}, {s(s_kh)}')
        I(f's_lshl_b32 {s(s_t0)}, {s(s_t1)}, 10')
        I(f's_add_u32 {s(s_t0)}, {s(s_t0)}, {WS_FH}')
        I(f'v_and_b32 {v(t0)}, 7, v0')
        I(f'v_min_u32 {v(t0)}, 6, {v(t0)}')
        I(f'v_lshlrev_b32 {v(t0)}, 7, {v(t0)}')
        I(f'v_add_u32 {v(r.FHR)}, {s(s_t0)}, {v(t0)}')
        I(f's_addk_i32 {s(s_t0)}, 896')
        I(f'v_mov_b32 {v(r.FOR)}, {s(s_t0)}')
        I(f's_and_b32 {s(s_t0)}, {s(s_w)}, 1')
        I(f's_lshl1_add_u32 {s(s_t0)}, {s(s_ch)}, {s(s_t0)}')
        I(f's_lshl_b32 {s(s_gb)}, {s(s_t1)}, 2')
        I(f's_add_u32 {s(s_gb)}, {s(s_gb)}, {s(s_t0)}')
        I(f's_lshl_b32 {s(s_gb)}, {s(s_gb)}, 7')
        I(f's_add_u32 {s(s_gb)}, {s(s_gb)}, {WS_GT}')
        I(f's_lshl2_add_u32 {s(s_t0)}, {s(s_rb)}, {s(s_t0)}')
        I(f's_lshl1_add_u32 {s(s_t0)}, {s(s_t0)}, {s(s_kh)}')
        I(f's_lshl_b32 {s(s_ob)}, {s(s_t0)}, 14')
        I(f's_add_u32 {s(s_ob)}, {s(s_ob)}, {WS_O}')
        I(f's_mul_i32 {s(s_hb)}, {s(s_t0)}, {7 * 4096}')
        I(f's_add_u32 {s(s_hb)}, {s(s_hb)}, {WS_H}')
        P.cur_prio = 9
        self.gelu(I, r.Z, 32, r.GT, r.C, False)
        P.cur_prio = 0

        def zslot(sg): return (sg + 2) & 3

        def z2_dma(sg):
            q = zslot(sg)
            I(f's_add_u32 m0, {s(s_w4k)}, {LW + q * 16384}')
            for g in range(4):
                I(f'buffer_load_dwordx4 {v(r.LIN)}, {s(sWS, 4)}, {s(s_z2o)} offen offset:{1024 * g} sc1 lds',
                  lrd=[f'Z{q}.f'], lwr=[f'Z{q}.w'], lat=cfg.get('z2_lat', 800))
            I(f's_add_u32 {s(s_z2o)}, {s(s_z2o)}, 0x4000')
            I(f's_and_b32 {s(s_z2o)}, {s(s_z2o)}, 0x3ffff')

        def w3tag(addr):
            if addr < LW: return 'PALL.f'
            if addr < LM: return f'Z{(addr - LW) >> 14}.f'
            return 'TI.f'
        w3 = [(sWO, c, WO_IMG + c * 8192) for c in (3, 4, 5, 6)] + [(sWOUT, c, c * 8192) for c in range(8)]
        w3_late = [(sWO, c, WO_IMG + c * 8192) for c in (0, 1, 2)] + [(sWOUT, 12, 12 * 8192)]
        w3_end = [(sWOUT, c, c * 8192) for c in (8, 9, 10, 11)]

        def w3_dma(item, free=None):
            srd, c, addr = item
            tg = 'WOI' if srd == sWO else 'WUI'
            I(f's_add_u32 m0, {s(s_w2k)}, {addr}')
            I(f's_mov_b32 {s(s_t3)}, {c * 64 * 896}')
            for i in range(2):
                I(f'buffer_load_dwordx4 {v(r.W3O + i)}, {s(srd, 4)}, {s(s_t3)} offen offset:{1024 * i} lds',
                  lrd=[free or w3tag(addr)], lwr=[tg + '.w'])

        for sg in range(3):
            z2_dma(sg)
        pall = False
        for sg in range(16):
            q = zslot(sg)
            rel = [f'Z{zslot(sg - 1)}'] if sg >= 1 else []
            extra = {}
            if sp.read == 32 and not pall:
                pall = True
                b = P.barrier(publish=[f'Z{q}'], release=rel + ['PALL'], after=[lastrd[0]])
                b.lwr |= {f'P{p}' for p in range(4)}
            else:
                P.barrier(publish=[f'Z{q}'], release=rel, after=[lastrd[0]])
            budget = 8
            sp.limit = NS + 2 * sg
            if sg + 3 < 16:
                z2_dma(sg + 3); budget -= 4
            while budget >= 4 and sp.issued < 32 and (sp.issued - sp.read < 4 or sp.read - NS < 2 * sg):
                sp_dma(); budget -= 4
            while sp.read < sp.issued and sp.read - NS < 2 * sg and (sp.issued == 32 or sp.read < 2 * sg + 4):
                sp_read()
            if sg == 14: w3 = w3_late + w3
            while budget >= 2 and sp.issued == 32 and w3 and (pall or w3[0][2] >= LW):
                w3_dma(w3.pop(0)); budget -= 2
            for ks in range(8):
                c = 2 * sg + (ks >> 2)
                assert c < sp.read, (c, sp.read)
                kd, b = slots[c % NS]
                for nt in range(2):
                    fr = r.ring.next()
                    lastrd[0] = I(f'ds_read_b128 {a(fr, 4)}, {v(r.ZR)} offset:{q * 16384 + ks * 2048 + nt * 1024}', lrd=[f'Z{q}.v'])
                    self.mfma(I, G + 16 * nt, a(fr, 4), R(kd, b + 4 * (ks & 3), 4))
        P.flush('phase2')
        self.stamp(P, 7)
        assert pall
        HP = 144
        for i in range(0, 32, 2):
            I(f'v_pk_mul_f32 {v(G + i, 2)}, {v(G + i, 2)}, {v(r.Z + i, 2)}')
        self.pack(I, HP, G, 32)
        for k in range(4):
            I(f'buffer_store_dwordx4 {v(HP + 4 * k, 4)}, {v(r.HW)}, {s(sWS, 4)}, 0 offen offset:{1024 * k} sc1',
              lwr=['HS.w'], lat=cfg.get('st_lat', 1800))
        fo_load = [f'buffer_load_dword {v(r.PL)}, {v(r.FOR)}, {s(sWS, 4)}, 0 offen sc1']
        I(fo_load[0])
        P.barrier(release=[f'Z{q}' for q in range(4)])
        rest = [x for x in w3 if x[0] == sWO] + [x for x in w3 if x[0] != sWO] + w3_end
        for x in rest: w3_dma(x)
        P.flush('hepi')
        self.stamp(P, 8)
        P.barrier(publish=['HS'])
        self.flag_store(I, r.FHW, r.TAG, 'HS')
        I(fz_check[0])
        P.flush('fochk', reorder=False)
        self.poll(P, 'fo', fo_load, fz_check)
        self.stamp(P, 9)

        OF, HF = 144, 0
        AO, AH = 80, 112
        s_q = 74
        for k in range(16):
            if k % 4 == 0:
                I(f's_add_u32 {s(s_q + k // 4)}, {s(s_ob)}, {k * 1024}')
            I(f'buffer_load_dwordx4 {a(OF + 4 * k, 4)}, {v(r.L16)}, {s(sWS, 4)}, {s(s_q + k // 4)} offen offset:{1024 * (k & 3)} sc1')
        I(f'v_and_b32 {v(t0)}, 31, v0')
        I(f'v_lshlrev_b32 {v(t0)}, 2, {v(t0)}')
        I(f'buffer_load_dword {v(r.BS)}, {v(t0)}, {s(sWS, 4)}, {s(s_gb)} offen sc1')
        fh_load = [f'buffer_load_dword {v(r.PL)}, {v(r.FHR)}, {s(sWS, 4)}, 0 offen sc1']
        P.barrier(publish=['WOI'])
        pre = {}
        for k in range(6):
            for nt in range(2):
                hh, sx = k >> 1, k & 1
                pre[k, nt], _ = self.trfrag(I, None, r.T3O + nt, (28 * hh + 16 * sx) * 128, 1024, 'WOI.v',
                                            reg=144 + 8 * k + 4 * nt, kind='v', addr2=(r.T3P + nt) if sx else None)
        b = P.barrier()
        b.lwr |= {'WOI.v', 'LAST.f'}; b.lrd |= {'WOI.v'}
        w3_dma((sWOUT, 13, 13 * 8192), free='LAST.f')
        I(fh_load[0])
        for k in range(16):
            for nt in range(2):
                hh, sx = k >> 1, k & 1
                if k < 6:
                    f = pre[k, nt]
                else:
                    f, _ = self.trfrag(I, r.ring, r.T3O + nt, (28 * hh + 16 * sx) * 128, 1024, 'WOI.v',
                                       addr2=(r.T3P + nt) if sx else None)
                self.mfma(I, AO + 16 * nt, f, a(OF + 4 * k, 4), C='0' if k == 0 else None)
        P.flush('opart')
        self.stamp(P, 10)
        I(fz_check[0])
        P.flush('fhchk', reorder=False)
        self.poll(P, 'fh', fh_load, fz_check)
        self.stamp(P, 11)

        for k in range(28):
            if k % 4 == 0:
                I(f's_add_u32 {s(s_q + k // 4)}, {s(s_hb)}, {k * 1024}')
            I(f'buffer_load_dwordx4 {a(HF + 4 * k, 4)}, {v(r.L16)}, {s(sWS, 4)}, {s(s_q + k // 4)} offen offset:{1024 * (k & 3)} sc1')
        P.barrier(publish=['WUI'], release=['WOI'])
        RW, RR, OW = r.XR, r.XR + 1, r.XR + 3
        I(f'v_and_b32 {v(t0)}, 31, v0')
        I(f'v_and_b32 {v(t1)}, 15, v0')
        I(f'v_xor_b32 {v(t1)}, {v(t1)}, {v(t4)}')
        I(f'v_lshlrev_b32 {v(t1)}, 4, {v(t1)}')
        I(f'v_lshl_add_u32 {v(t0)}, {v(t0)}, 8, {v(t1)}')
        I(f's_lshl_b32 {s(s_t0)}, {s(s_w)}, 13')
        I(f's_add_u32 {s(s_t0)}, {s(s_t0)}, {LM}')
        I(f'v_add_u32 {v(RW)}, {s(s_t0)}, {v(t0)}')
        I(f'v_lshrrev_b32 {v(t0)}, 3, v0')
        I(f'v_and_b32 {v(t1)}, 7, v0')
        I(f'v_lshlrev_b32 {v(t2)}, 1, {v(t1)}')
        I(f'v_xor_b32 {v(t2)}, {v(t2)}, {v(t0)}')
        I(f'v_lshlrev_b32 {v(t2)}, 4, {v(t2)}')
        I(f'v_lshl_add_u32 {v(t2)}, {v(t0)}, 8, {v(t2)}')
        I(f's_add_u32 {s(s_t0)}, {s(s_w4k)}, {LM}')
        I(f'v_add_u32 {v(RR)}, {s(s_t0)}, {v(t2)}')
        I(f's_lshl1_add_u32 {s(s_t0)}, {s(s_rb)}, {s(s_ch)}')
        I(f's_lshl2_add_u32 {s(s_t0)}, {s(s_t0)}, {s(s_w)}')
        I(f's_mul_i32 {s(s_t0)}, {s(s_t0)}, {16 * 896}')
        I(f's_lshl_b32 {s(s_t1)}, {s(s_jj)}, 7')
        I(f's_add_u32 {s(s_t0)}, {s(s_t0)}, {s(s_t1)}')
        I(f's_add_u32 {s(s_t1)}, {s(s_t0)}, {8 * 896}')
        I(f'v_mul_u32_u24 {v(t0)}, 896, {v(t0)}')
        I(f'v_lshl_add_u32 {v(OW)}, {v(t1)}, 4, {v(t0)}')
        RA = 144
        for k in range(8):
            I(f'v_xor_b32 {v(RA + k)}, {32 * k}, {v(RW)}')
        for k in range(4):
            I(f'v_xor_b32 {v(RA + 8 + k)}, {128 * (k >> 1) + 16 * (k & 1)}, {v(RR)}')
        for k in range(28):
            for nt in range(2):
                f, _ = self.trfrag(I, r.ring, r.T3H + nt, k * 2048, 1024, 'WUI.v')
                self.mfma(I, AH + 16 * nt, f, a(HF + 4 * k, 4), C='0' if k == 0 else None)
        P.flush('hpart')
        self.stamp(P, 12)
        for i in range(0, 32, 2):
            I(f'v_pk_fma_f32 {v(AO + i, 2)}, {v(AH + i, 2)}, {v(r.BS & ~1, 2)}, {v(AO + i, 2)} op_sel:[0,{r.BS & 1},0] op_sel_hi:[1,{r.BS & 1},1]')
        for k in range(8):
            I(f'ds_write_b128 {v(RA + k)}, {v(AO + 4 * k, 4)}', lrd=['WOI.f'], lwr=['RED.w'])
        P.barrier(publish=['RED'])
        RD = 160
        for i in range(2):
            for kh in range(2):
                for hf in range(2):
                    I(f'ds_read_b128 {v(RD + 16 * i + 8 * kh + 4 * hf, 4)}, {v(RA + 8 + 2 * i + hf)} offset:{kh * 16384 + i * 2048}', lrd=['RED.v'])
        for i in range(2):
            for e in range(0, 8, 2):
                I(f'v_pk_add_f32 {v(RD + 16 * i + e, 2)}, {v(RD + 16 * i + e, 2)}, {v(RD + 16 * i + 8 + e, 2)}')
            self.pack(I, RD + 16 * i + 8, RD + 16 * i, 8)
            I(f'buffer_store_dwordx4 {v(RD + 16 * i + 8, 4)}, {v(OW)}, {s(sOUT, 4)}, {s(s_t0 + i)} offen')
        I(f's_or_b32 {s(s_t2)}, s2, {s(s_w)}')
        I(f'v_or_b32 {v(t0)}, {s(s_t2)}, v0')
        I(f'v_min_u32 {v(t0)}, 1, {v(t0)}')
        I(f'v_lshlrev_b32 {v(t0)}, 30, {v(t0)}')
        I(f'buffer_store_dword {v(r.TAG)}, {v(t0)}, {s(sWS, 4)}, 0 offen sc1')
        P.flush('final')
        self.stamp(P, 13)
        self.stamp_flush(P)
        P.raw('s_endpgm')

    def helper_prog(self, P):
        cfg = self.cfg
        I = P.I
        V = Regs('v', 1, 256)

        class r: pass
        t0, t1, t2, t3, t4 = (V.get() for _ in range(5))
        assert self.vTS == V.get(2)
        r.XO = V.get(4); r.QO = V.get(4); r.KO = V.get(2)
        r.XR = V.get(4); r.TQ = V.get(4); r.TK = V.get(); r.TPH = V.get()
        r.L16 = V.get(); r.TW = V.get(2); r.TRK = V.get(2); r.VR = V.get(); r.VW = V.get()
        r.ONES = V.get(); r.FF = V.get(); r.EP = V.get(); r.TAG = V.get(); r.G = V.get(); r.KVW = V.get()
        r.T2 = V.get(2, 2); r.SS = V.get(8)
        r.PHO = r.SS; r.GWA = r.TAG
        assert V.cur <= 52, V.cur
        r.E = 52
        r.GWV = 52
        r.K, r.V = 80, 96
        r.KP, r.VP = 112, 120
        r.PK = 80
        r.KVA = 96
        Qa = [128 + 16 * h for h in range(8)]
        r.s_kvp = 95
        XF = 0
        r.ring = self.FragRing('a', 112, 8)
        PHI_IMG = 0xC000
        r.phi_off = 3 * 16384 + 2048
        PHB = LP + 3 * 4096

        def phi_addr(h): return (h >> 1) * 16384 + (h & 1) * 2048

        Iraw = P.raw
        self.rowdma_offsets(Iraw, r.XO, 896, t0, t1)
        for c in range(7):
            Iraw(f's_mul_i32 {s(s_wqo + c)}, {s(s_xo + c)}, 1344')
        self.kvdma_offsets(Iraw, r.KO, t0, t1)
        Iraw(f's_mul_i32 {s(s_t0)}, {s(s_w)}, {16 * 2688}')
        Iraw(f's_mul_i32 {s(s_t1)}, {s(s_ch)}, 448')
        Iraw(f's_add_u32 {s(s_t0)}, {s(s_t0)}, {s(s_t1)}')
        Iraw(f'v_lshrrev_b32 {v(t0)}, 4, v0')
        Iraw(f'v_lshlrev_b32 {v(t1)}, 2, {v(t0)}')
        Iraw(f'v_xor_b32 {v(t1)}, v0, {v(t1)}')
        Iraw(f'v_and_b32 {v(t1)}, 15, {v(t1)}')
        Iraw(f'v_mul_u32_u24 {v(t0)}, 2688, {v(t0)}')
        Iraw(f'v_add_u32 {v(t0)}, {s(s_t0)}, {v(t0)}')
        Iraw(f'v_lshl_add_u32 {v(r.QO)}, {v(t1)}, 4, {v(t0)}')
        for g in range(1, 4):
            Iraw(f'v_add_u32 {v(r.QO + g)}, {g * (4 * 2688 - 1024)}, {v(r.QO)}')
        Iraw(f's_lshl_b32 {s(s_w4k)}, {s(s_w)}, 12')
        Iraw(f'v_mov_b32 {v(t0)}, 0')
        if cfg.get('stamps'):
            Iraw(f'v_mov_b32 {v(self.vTS)}, 0')
        Iraw('s_waitcnt lgkmcnt(0)')
        self.stamp(P, 0)

        def dma_x(c):
            p = c % 3
            I(f's_add_u32 m0, {s(s_wP)}, {LP + p * 4096}')
            for g in range(4):
                I(f'buffer_load_dwordx4 {v(r.XO + g)}, {s(sX, 4)}, {s(s_xo + c)} offen offset:{1024 * g} lds', lwr=[f'P{p}'])

        def dma_kv(c):
            q = c % 2
            I(f's_add_u32 m0, {s(s_w2k)}, {LW + q * 8192}')
            for i in range(2):
                I(f'buffer_load_dwordx4 {v(r.KO + i)}, {s(sWQ, 4)}, {s(s_wqo + c)} offen offset:{1024 * i} lds',
                  lrd=[f'K{q}.f'], lwr=[f'K{q}.d'])

        def dma_q(n):
            q = n % 3
            ex = 224 * (n // 7)
            I(f's_add_u32 m0, {s(s_w4k)}, {LW + 16384 + q * 16384 - ex}')
            for g in range(4):
                I(f'buffer_load_dwordx4 {v(r.QO + g)}, {s(sWQ, 4)}, {s(s_wqo + n % 7)} offen offset:{1024 * g + ex} lds',
                  lrd=[f'Q{q}.f'], lwr=[f'Q{q}.w'])

        I(f'buffer_load_dword {v(r.EP)}, {v(t0)}, {s(sWS, 4)}, 0 offen sc1')
        dma_x(0); dma_kv(0); dma_q(0)
        P.flush('first', reorder=False)
        self.rest_srds(P)
        I(f'v_and_b32 {v(t0)}, 15, v0')
        I(f's_lshl_b32 {s(s_t0)}, {s(s_w)}, 5')
        I(f'v_lshl_add_u32 {v(t1)}, {v(t0)}, 1, {s(s_t0)}')
        for c in range(7):
            I(f'buffer_load_ushort {v(r.GWV + c)}, {v(t1)}, {s(sGW, 4)}, {s(s_xo + c)} offen')
        I(f's_add_u32 {s(s_t0)}, {s(s_w2k)}, {LW + 56}')
        I(f'v_lshl_add_u32 {v(r.GWA)}, {v(t0)}, 6, {s(s_t0)}')
        dma_x(1); dma_kv(1); dma_q(1); dma_x(2)
        self.xread_addrs(I, r.XR, t0, t1)
        self.tr_common(I, t2, t3, t4)
        I(f'v_lshlrev_b32 {v(r.L16)}, 4, v0')
        self.kv_setup(I, r, t0, t1, t2, t3, t4, PHB)
        I(f'v_lshl_add_u32 {v(t0)}, {v(t4)}, 3, {v(t2)}')
        I(f'v_lshlrev_b32 {v(t0)}, 8, {v(t0)}')
        I(f'v_add_u32 {v(t0)}, {LW + 16384}, {v(t0)}')
        for hh in range(4):
            I(f'v_add_u32 {v(t1)}, {56 * hh}, {v(t3)}')
            I(f'v_lshlrev_b32 {v(r.TQ + hh)}, 6, {v(t2)}')
            I(f'v_xor_b32 {v(t1)}, {v(t1)}, {v(r.TQ + hh)}')
            I(f'v_add_u32 {v(r.TQ + hh)}, {v(t0)}, {v(t1)}')
        self.phi_dma_offset(I, r.PHO, t0, t1)
        P.flush('setup', reorder=False)

        lastrd = [None]
        for c in range(7):
            for k in range(4):
                I(f'ds_read_b128 {a(XF + 16 * c + 4 * k, 4)}, {v(r.XR + k)} offset:{(c % 3) * 4096}', lrd=[f'P{c % 3}'])
            I(f'ds_write_b16 {v(r.GWA)}, {v(r.GWV + c)} offset:{(c % 2) * 8192}', lrd=[f'K{c % 2}.d'], lwr=[f'K{c % 2}.w'])
            rel = [f'K{(c - 1) % 2}', f'Q{(c - 1) % 3}'] if c else []
            P.barrier(publish=[f'K{c % 2}', f'Q{c % 3}'], release=rel, after=[lastrd[0]])
            if c and c + 1 < 7: dma_kv(c + 1)
            dma_q(c + 2)
            if c + 3 < 7: dma_x(c + 3)
            if c >= 3:
                for h in ((7, 0) if c == 3 else (2 * c - 7, 2 * c - 6)):
                    I(f's_lshl3_add_u32 {s(s_t3)}, {s(s_ch)}, {h}')
                    I(f's_mul_i32 {s(s_t3)}, {s(s_t3)}, 1568')
                    self.phi_dma(I, r.PHO, s_t3, PHB + phi_addr(h), 'PHI')
            for ks in range(4):
                o = (c % 2) * 8192 + ks * 2048
                first = '0' if c == 0 and ks == 0 else None
                xf = a(XF + 16 * c + 4 * ks, 4)
                f, _ = self.trfrag(I, r.ring, r.TK, o, 256, f'K{c % 2}.v')
                self.mfma(I, r.K, f, xf, C=first)
                f, _ = self.trfrag(I, r.ring, r.TK, o + 1024, 256, f'K{c % 2}.v')
                self.mfma(I, r.V, xf, f, C=first)
                for hh in range(4):
                    f, lastrd[0] = self.trfrag(I, r.ring, r.TQ + hh, (c % 3) * 16384 + ks * 4096, 1024, f'Q{c % 3}.v')
                    self.mfma(I, Qa[hh], f, xf, C=first)
        self.tag_setup(I, r.EP)
        I(f'v_mov_b32 {v(r.TAG)}, {s(s_tag)}')
        P.flush('pass1')
        self.stamp(P, 1)

        def q_tail(h):
            self.pack(I, r.KP, Qa[h], 16)
            for sx in range(2):
                f, _ = self.trfrag(I, r.ring, r.TPH, phi_addr(h) + sx * 1024, 512, 'PHI.v')
                self.mfma(I, r.PK, f, v(r.KP + 4 * sx, 4), C='0' if sx == 0 else None)
            self.softmax2(I, r.PK, r.E, Qa[h], r.T2, False, Ssave=r.SS + h)

        I(f'v_mov_b32 {v(r.G)}, {v(r.K + 12)}')
        I(f'v_mov_b32 {v(t0)}, {v(r.K + 12)}')
        I(f'v_permlane32_swap_b32 {v(t0)}, {v(r.G)}')
        I(f'v_mul_f32 {v(r.G)}, {fbits(-LOG2E)}, {v(r.G)}')
        I(f'v_exp_f32 {v(r.G)}, {v(r.G)}')
        I(f'v_add_f32 {v(r.G)}, 1.0, {v(r.G)}')
        I(f'v_rcp_f32 {v(r.G)}, {v(r.G)}')
        for c in range(7):
            n = 7 + c
            pub = [f'Q{n % 3}'] + (['PHI'] if c == 0 else []) + (['TI', 'VF'] if c == 3 else [])
            P.barrier(publish=pub, release=[f'Q{(n - 1) % 3}'], after=[lastrd[0]])
            if n + 2 < 14: dma_q(n + 2)
            if c == 0:
                P.cur_prio = 2
                self.kv_tail_a(P, r)
                P.cur_prio = 0
            if c == 3:
                self.kv_tail_b(P, r)
            for ks in range(4):
                for hh in range(4):
                    f, lastrd[0] = self.trfrag(I, r.ring, r.TQ + hh, (n % 3) * 16384 + ks * 4096, 1024, f'Q{n % 3}.v')
                    self.mfma(I, Qa[4 + hh], f, a(XF + 16 * c + 4 * ks, 4), C='0' if c == 0 and ks == 0 else None)
            if c in (3, 5):
                P.cur_prio = 3
                q_tail((c - 3) // 2)
                P.cur_prio = 0
        P.flush('pass2')
        self.stamp(P, 2)
        nq = cfg.get('hq_a', 4)
        for h in range(2, nq): q_tail(h)
        P.flush('qt_a')
        RG = 52
        s_q = 74
        I(f's_lshl1_add_u32 {s(s_t0)}, {s(s_rb)}, {s(s_ch)}')
        I(f's_lshl2_add_u32 {s(s_t0)}, {s(s_t0)}, {s(s_w)}')
        I(f's_lshl_b32 {s(s_t1)}, {s(s_t0)}, 14')
        for k in range(4):
            I(f's_add_u32 {s(s_q + k)}, {s(s_t1)}, {WS_KVP + 4096 * k}')
        I(f's_lshl_b32 {s(s_t0)}, {s(s_t0)}, 10')
        I(f's_add_u32 {s(s_q + 4)}, {s(s_t0)}, {WS_KVF}')
        ld = [f'buffer_load_dwordx4 {v(RG + 4 * k, 4)}, {v(r.L16)}, {s(sWS, 4)}, {s(s_q + (k >> 2))} offen offset:{1024 * (k & 3)} sc1'
              for k in range(16)]
        ck = [f'v_xor_b32 {v(t0)}, {s(s_tag)}, {v(RG)}'] + \
             [f'v_bitop3_b32 {v(t0)}, {v(RG + i)}, {s(s_tag + (i & 3))}, {v(t0)} bitop3:0xbe' for i in range(1, 64)] + \
             [f'v_and_b32 {v(t0)}, 0xff, {v(t0)}', f'v_cmp_ne_u32 vcc, 0, {v(t0)}']
        for x in ld + ck: I(x)
        P.flush('kvr_ld', reorder=False)
        self.poll(P, 'kvp', ld, ck)
        self.stamp(P, 3)
        for i in range(64):
            I(f'v_and_b32 {v(RG + i)}, 0xffffff00, {v(RG + i)}')
        for k in range(1, 16):
            for e in (0, 2):
                I(f'v_pk_add_f32 {v(RG + e, 2)}, {v(RG + e, 2)}, {v(RG + 4 * k + e, 2)}')
        self.pack(I, RG + 4, RG, 4)
        I(f'v_mov_b32 {v(RG + 6)}, {s(s_tag)}')
        I(f'v_mov_b32 {v(RG + 7)}, {s(s_tag)}')
        I(f'buffer_store_dwordx4 {v(RG + 4, 4)}, {v(r.L16)}, {s(sWS, 4)}, {s(s_q + 4)} offen sc1')
        P.flush('kvr')
        self.stamp(P, 4)
        for h in range(nq, 8): q_tail(h)
        P.flush('qt_b')
        self.stamp(P, 5)
        I(f's_lshl2_add_u32 {s(s_t0)}, {s(s_ch)}, {s(s_w)}')
        I(f's_lshl_b32 {s(s_t1)}, {s(s_t0)}, 14')
        for k in range(4):
            I(f's_add_u32 {s(s_q + k)}, {s(s_t1)}, {WS_KVF + 4096 * k}')
        ck = [f'v_xor_b32 {v(t0)}, {s(s_tag)}, {v(RG + 2)}'] + \
             [f'v_bitop3_b32 {v(t0)}, {v(RG + 4 * k + 2)}, {s(s_tag)}, {v(t0)} bitop3:0xbe' for k in range(1, 16)] + \
             [f'v_cmp_ne_u32 vcc, 0, {v(t0)}']
        for x in ld + ck: I(x)
        P.flush('kvf_ld', reorder=False)
        self.poll(P, 'kvf', ld, ck)
        self.stamp(P, 6)
        KW, KR, OWs, FW, GW = r.XO, r.XO + 1, 78, r.XO + 2, r.XO + 3
        I(f'v_add_u32 {v(KR)}, {LW}, {v(r.L16)}')
        I(f's_lshl_b32 {s(s_t0)}, {s(s_w)}, 13')
        I(f'v_add_u32 {v(KW)}, {s(s_t0)}, {v(KR)}')
        P.barrier(release=['K0', 'K1', 'Q0', 'Q1', 'Q2', 'KVI'])
        for k in range(16):
            I(f'ds_write_b64 {v(KW)}, {v(RG + 4 * k, 2)} offset:{(k >> 1) * 1024 + (k & 1) * 8}', lrd=['KVI.f'], lwr=['KVI.w'])
        P.barrier(publish=['KVI'])
        I(f's_lshl2_add_u32 {s(s_t0)}, {s(s_rb)}, {s(s_w)}')
        I(f's_lshl1_add_u32 {s(s_t0)}, {s(s_t0)}, {s(s_ch)}')
        I(f's_lshl_b32 {s(s_t0)}, {s(s_t0)}, 14')
        for k in range(4):
            I(f's_add_u32 {s(s_q + k)}, {s(s_t0)}, {WS_O + 4096 * k}')
        I(f's_lshl4_add_u32 {s(s_t0)}, {s(s_rb)}, {s(s_head)}')
        I(f's_lshl_b32 {s(s_t0)}, {s(s_t0)}, 7')
        I(f's_add_u32 {s(s_t0)}, {s(s_t0)}, {WS_FH}')
        self.lane0_only(I, FW, s_t0, t0)
        I(f's_lshl1_add_u32 {s(s_t0)}, {s(s_rb)}, {s(s_ch)}')
        I(f's_lshl2_add_u32 {s(s_t0)}, {s(s_t0)}, {s(s_w)}')
        I(f's_lshl_b32 {s(s_t0)}, {s(s_t0)}, 7')
        I(f's_add_u32 {s(s_t0)}, {s(s_t0)}, {WS_GT}')
        I(f'v_lshlrev_b32 {v(t0)}, 30, {v(t4)}')
        I(f'v_lshl_add_u32 {v(GW)}, v0, 2, {v(t0)}')
        I(f'v_sub_f32 {v(t1)}, 1.0, {v(r.G)}')
        I(f'buffer_store_dword {v(t1)}, {v(GW)}, {s(sWS, 4)}, {s(s_t0)} offen sc1', lwr=['OS.w'])
        I(f'v_cmp_eq_u32 {s(s_mask, 2)}, 0, {v(t4)}')
        I(f's_mov_b32 {s(s_t3)}, {fbits(1e-6)}')
        for h in range(8):
            N = 64 + 16 * (h % 3)
            OP = 112 + 8 * (h & 1)
            d, d2 = 52 + 2 * (h & 1), 53 + 2 * (h & 1)
            for k in range(4):
                fr = r.ring.next()
                I(f'ds_read_b128 {a(fr, 4)}, {v(KR)} offset:{h * 4096 + k * 1024}', lrd=['KVI.v'])
                self.mfma(I, N, a(fr, 4), v(Qa[h] + 4 * k, 4), C='0' if k == 0 else None)
            I(f'v_mov_b32 {v(d)}, {v(N + 12)}')
            I(f'v_mov_b32 {v(d2)}, {v(N + 12)}')
            I(f'v_permlane32_swap_b32 {v(d2)}, {v(d)}')
            I(f'v_fma_f32 {v(d)}, {v(r.SS + h)}, {s(s_t3)}, {v(d)}')
            I(f'v_rcp_f32 {v(d)}, {v(d)}')
            I(f'v_mul_f32 {v(d)}, {v(d)}, {v(r.G)}')
            I(f'v_cndmask_b32 {v(d2)}, 0, {v(d)}, {s(s_mask, 2)}')
            for i in range(16):
                I(f'v_mul_f32 {v(N + i)}, {v(N + i)}, {v(d if i < 12 else d2)}')
            self.pack(I, OP, N, 16)
            for sx in range(2):
                k = 2 * h + sx
                I(f'buffer_store_dwordx4 {v(OP + 4 * sx, 4)}, {v(r.L16)}, {s(sWS, 4)}, {s(s_q + (k >> 2))} offen offset:{1024 * (k & 3)} sc1',
                  lwr=['OS.w'])
        P.barrier(publish=['OS'])
        self.flag_store(I, FW, r.TAG, 'OS')
        P.flush('o')
        self.stamp(P, 7)
        self.stamp_flush(P)
        P.raw('s_endpgm')

    def build(self):
        hdr = open('cdna_kernels/' + NAME + '.s.ref').read().split('; Override launch')[0]
        P0 = Prog()
        self.prologue(P0)
        P0.raw(f's_cmp_eq_u32 {s(s_jj)}, 7')
        P0.raw('s_cbranch_scc1 Lhelper')
        PM = Prog(); self.main_prog(PM)
        PH = Prog(); self.helper_prog(PH)
        self.logs = PM.log + ['--'] + PH.log
        txt = hdr + f'; @launch grid=(256,1,1) block=(256,1,1) lds={LDS_BYTES}\n'
        txt += f'.amdgcn_target "amdgcn-amd-amdhsa--gfx950"\n.text\n.globl {KN}\n.p2align 8\n.type {KN},@function\n{KN}:\n'
        txt += P0.text() + PM.text() + '.p2align 6\nLhelper:\n' + PH.text() + '\n'.join(self.tail) + '\nLexit:\n  s_endpgm\n'
        txt += f'''.section .rodata,"a"
.p2align 6
.amdhsa_kernel {KN}
  .amdhsa_next_free_vgpr 512
  .amdhsa_next_free_sgpr 102
  .amdhsa_accum_offset 256
  .amdhsa_group_segment_fixed_size 0
  .amdhsa_kernarg_size 104
  .amdhsa_user_sgpr_count 2
  .amdhsa_user_sgpr_kernarg_segment_ptr 1
  .amdhsa_system_sgpr_workgroup_id_x 1
.end_amdhsa_kernel
'''
        return txt


if __name__ == '__main__':
    cfg = {}
    out = 'cdna_kernels/' + NAME + '.s'
    for x in sys.argv[1:]:
        k, val = x.split('=')
        if k == 'out': out = val
        else: cfg[k] = int(val)
    g = Gen(cfg)
    t = g.build()
    open(out, 'w').write(t)
    print('\n'.join(g.logs))
```

```python
import sys
src, out, kind = sys.argv[1], sys.argv[2], sys.argv[3]
s = open(src).read()
KN='gated_mix__linear_kernel_hedgehog__mixer_gmlp__prompt_kernel'
i = s.index('.p2align 6\nLhelper:')
j = s.rindex('s_endpgm', 0, i)
if kind.startswith('bx'):
    ptr, size, base = 32, 2048*896, 0
elif kind.startswith('ws'):
    ptr, size, base = 96, 256<<20, int(kind[2:] or 0) << 20
n = 0 if kind == 'bx0' else 64
body = "".join(f"  buffer_load_dwordx4 v1, s[4:7], s20 offen lds\n  s_add_u32 s20, s20, 4096\n" + ("  s_waitcnt vmcnt(32)\n" if k % 16 == 15 else "") for k in range(n))
p = f"""  s_cmp_lg_u32 s2, 100
  s_cbranch_scc1 Lpd
  s_load_dwordx2 s[4:5], s[0:1], {ptr}
  s_mov_b32 s6, {size}
  s_mov_b32 s7, 0x20000
  s_waitcnt vmcnt(0) lgkmcnt(0)
  s_barrier
  s_lshl_b32 s22, s51, 10
  s_mov_b32 m0, s22
  v_lshlrev_b32 v1, 4, v0
  v_add_u32 v1, s22, v1
  s_mov_b32 s20, {base}
  v_mov_b32 v2, 0x100000
  buffer_load_dword v3, v2, s[4:7], s20 offen
  s_waitcnt vmcnt(0)
  s_sleep 100
  s_barrier
  s_memrealtime s[30:31]
{body}  s_waitcnt vmcnt(0)
  s_barrier
  s_memrealtime s[32:33]
  s_waitcnt lgkmcnt(0)
  s_sub_u32 s33, s32, s30
  s_min_u32 s33, s33, 2000
  s_mul_i32 s33, s33, 10
  s_add_u32 s33, s33, s30
Lpw:
  s_memrealtime s[34:35]
  s_waitcnt lgkmcnt(0)
  s_sub_u32 s34, s34, s33
  s_cmp_lt_i32 s34, 0
  s_cbranch_scc1 Lpw
Lpd:
  """
open(out, 'w').write(s[:j] + p.lstrip() + s[j:])
```
